```python
import torch

def _softmax(x, axis=-1):
    return torch.softmax(x, dim=axis)

def _gelu(x):
    return torch.nn.functional.gelu(x, approximate='tanh')

def _silu(x):
    return torch.nn.functional.silu(x)

def _sigmoid(x):
    return torch.sigmoid(x)

def _layernorm(x, axis=-1, eps=1e-05):
    m = x.mean(dim=axis, keepdim=True)
    v = x.var(dim=axis, keepdim=True, unbiased=False)
    return (x - m) / torch.sqrt(v + eps)

def _scatter_add(tgt, idx, src, axis=0):
    return tgt.clone().index_add_(axis, idx, src)

def _segment_sum(src, seg, n):
    out = torch.zeros((n,) + src.shape[1:], dtype=src.dtype)
    return out.index_add_(0, seg, src)

def _pad(x, pw):
    flat = tuple((v for pair in reversed(pw) for v in pair))
    return torch.nn.functional.pad(x, flat)
kernel_name = 'concat_heads__linear_attn_block__memory_aug_recurrent_mem_tr__prompt'

def setup_inputs():

    _w = lambda a: (lambda t: t.to(torch.bfloat16) if t.is_floating_point() else t)(torch.as_tensor(a))

    def _A_setup():
        B, S, D = (1, 2048, 512)
        return {'x': _w((lambda *s: torch.randn(*s, dtype=torch.bfloat16) * 0.05)(B, S, D)), 'wqkv': _w((lambda *s: torch.randn(*s, dtype=torch.bfloat16) * 0.4)(D, 3 * D)), 'wo': _w((lambda *s: torch.randn(*s, dtype=torch.bfloat16) * 0.1)(D, D))}
    _A_in = _A_setup()

    def _B_setup():
        B, S, Dm = (1, 2048, 512)
        H, Dh = (32, 128)
        M, seg = (8, 32)
        seg = min(seg, S)
        S = S // seg * seg
        return {'x': _w((lambda *s: torch.randn(*s, dtype=torch.bfloat16) * 0.05)(B, S, Dm)), 'mem0': _w((lambda *s: torch.randn(*s, dtype=torch.bfloat16) * 0.4)(B, M, Dm)), 'Wq': _w((lambda *s: torch.randn(*s, dtype=torch.bfloat16) * 6.4)(Dm, H, Dh) * Dm ** (-0.5)), 'Wk': _w((lambda *s: torch.randn(*s, dtype=torch.bfloat16) * 6.4)(Dm, H, Dh) * Dm ** (-0.5)), 'Wv': _w((lambda *s: torch.randn(*s, dtype=torch.bfloat16) * 0.4)(Dm, H, Dh) * Dm ** (-0.5)), 'Wo': _w((lambda *s: torch.randn(*s, dtype=torch.bfloat16) * 0.4)(H, Dh, Dm) * (H * Dh) ** (-0.5)), 'seg_len': seg}
    _B_in = _B_setup()
    return {'A_x': _A_in['x'], 'A_wqkv': _A_in['wqkv'], 'A_wo': _A_in['wo'], 'B_x': _B_in['x'], 'B_mem0': _B_in['mem0'], 'B_Wq': _B_in['Wq'], 'B_Wk': _B_in['Wk'], 'B_Wv': _B_in['Wv'], 'B_Wo': _B_in['Wo'], 'B_seg_len': _B_in['seg_len']}

def reference(A_x, A_wqkv, A_wo, B_x, B_mem0, B_Wq, B_Wk, B_Wv, B_Wo, B_seg_len):

    def _A_ref(x, wqkv, wo):
        B, S, D = x.shape
        H = 32
        Dh = D // H
        qkv = (lambda x, *d: x.permute(*d))((x @ wqkv).reshape(B, S, 3, H, Dh), 2, 0, 3, 1, 4)
        q, k, v = (qkv[0], qkv[1], qkv[2])
        phi = lambda t: torch.where(t > 0, t + 1, torch.exp(t)) + 1e-06
        pq, pk = (phi(q), phi(k))
        kv = torch.einsum('bhsd,bhse->bhde', pk, v)
        z = torch.einsum('bhsd->bhd', pk)
        num = torch.einsum('bhqd,bhde->bhqe', pq, kv)
        den = torch.einsum('bhqd,bhd->bhq', pq, z)[..., None] + 1e-06
        o = num / den
        return (lambda x, *d: x.permute(*d))(o, 0, 2, 1, 3).reshape(B, S, D) @ wo

    def _B_ref(x, mem0, Wq, Wk, Wv, Wo, seg_len):
        B, S, Dm = x.shape
        H, Dh = (Wq.shape[1], Wq.shape[2])
        M = mem0.shape[1]
        scale = Dh ** (-0.5)
        n_seg = S // seg_len
        L = M + seg_len
        idx = torch.arange(L)
        mask = (idx[:, None] < M) | (idx[:, None] >= idx[None, :])
        mem = mem0
        outs = []
        for s in range(n_seg):
            xs = x[:, s * seg_len:(s + 1) * seg_len, :].clone()
            h = torch.concatenate([mem, xs], axis=1)
            q = torch.einsum('btd,dhe->bhte', h, Wq)
            k = torch.einsum('btd,dhe->bhte', h, Wk)
            v = torch.einsum('btd,dhe->bhte', h, Wv)
            scores = torch.einsum('bhqe,bhke->bhqk', q, k) * scale
            scores = torch.where(mask[None, None], scores, -1000000000.0)
            p = _softmax(scores, axis=-1)
            o = torch.einsum('bhqk,bhke->bhqe', p, v)
            o = torch.einsum('bhte,hed->btd', o, Wo)
            mem = o[:, :M, :].clone()
            outs.append(o[:, M:, :])
        return torch.concatenate(outs, axis=1)
    a = _A_ref(A_x, A_wqkv, A_wo)
    b = _B_ref(B_x, B_mem0, B_Wq, B_Wk, B_Wv, B_Wo, B_seg_len)
    return torch.concatenate([a, b], axis=-1)
```

```python
class Asm:
    def __init__(self):
        self.L = []
        self.uid = 0
    def __call__(self, s=""):
        for ln in s.split("\n"):
            ln = ln.strip()
            if not ln:
                continue
            if ln.endswith(":"):
                self.L.append(ln)
            else:
                self.L.append("    " + ln)
    def c(self, s):
        self.L.append("    ; " + s)
    def label(self, base):
        self.uid += 1
        return f"L_{base}_{self.uid}"
    def text(self):
        return "\n".join(self.L) + "\n"

def vr(b, n=1):
    return f"v{b}" if n == 1 else f"v[{b}:{b+n-1}]"
def ar(b, n=1):
    return f"a{b}" if n == 1 else f"a[{b}:{b+n-1}]"
def sr(b, n=1):
    return f"s{b}" if n == 1 else f"s[{b}:{b+n-1}]"

SENT = 0x7F817F81
OOB = 0x7F000000

WS_KV   = 0
WS_Q    = 32 << 20
WS_HIST = 48 << 20
WS_INB  = 60 << 20
WS_MEM  = (60 << 20) + (768 << 10)
WS_FLG  = (61 << 20)
WS_PROF = 62 << 20
WS_O    = 64 << 20
WS_PA   = 80 << 20
WS_OA   = 82 << 20
WS_SIZE = 256 << 20
```

```python
from common import *

S_WG = 2
S_W  = (4, 4)
SRD_T = 4
SRD_WS = 8
SRD_DBG = 12
S_WAVE = 16
S_H = 17
S_STEP = 18
S_T0, S_T1, S_T2, S_T3 = 19, 20, 21, 22
S_CB = 24
S_SELLO, S_SELHI = 28, 29
S_KVOFF = 30
S_INBP = 31
S_INBC = 32
S_LDE = 33
S_LDL = 75
S_INBR = 34
S_MEMN = 35
S_MEMR = 36
S_HIST = 37
S_ANN = 38
S_RETRY = 39
P_AX, P_AWQKV, P_AWO, P_BX, P_MEM0, P_WQ, P_WK, P_WV, P_WO, P_SEG, P_OUT, P_DBG, P_WS = range(40, 66, 2)
S_MASK = 66
S_C = 68
S_FLGO = 70
S_TOT = 71
S_M2 = 72
S_PROF = 74
S_TS = 76
S_SEGN = 23
S_ONE = 98
S_SENT = 100

DBG_TICK0 = 0
DBG_INIT = 64
DBG_ERR = 68
DBG_TICK = 128
DBG_OVF = 192

KVL = 0
MX = 16384
ZI = 24576
CONSTL = 28928
ROLEL = 30208
WOL = 32768

V_L16, V_W2, V_WOA, V_IDX, V_ZW, V_ZR, V_OW, V_OR, V_PST, V_MPUB, V_FLG, V_TMP = range(0, 12)
V_VM = 12
V_PM = 16
V_S = 20
V_M = 32
V_A = 64
V_V = 80
V_VX = 88
V_KX = 96
V_WV = 128

def mk_srd(e, srd, ptr, nbytes):
    e(f"s_mov_b32 s{srd}, s{ptr}")
    e(f"s_and_b32 s{srd+1}, s{ptr+1}, 0xffff")
    e(f"s_mov_b32 s{srd+2}, {nbytes:#x}")
    e(f"s_mov_b32 s{srd+3}, 0x20000")

def rr_sparse(rr): return 64 * (rr >> 2) + 16 * (rr & 1) + 2 * ((rr & 3) >> 1)
def rr_dense(rr):  return 32 * (rr >> 2) + 2 * (rr & 3)

def weight_loader(e, team, pre_out):
    rrp = rr_sparse if team else rr_dense
    cstep = 4 if team else 64
    VC, VG, VQK, VV, VWO, VSW0, VSW1, VSR = 1, 2, 3, 4, 5, 6, 7, 8
    VWOA = 12
    TMP = 16
    RING = 48
    SRD_QK, SRD_V, SRD_O = 4, 84, 88
    e.c("---- weight loader ----")
    e(f"v_lshrrev_b32 v{VC}, 4, v{V_L16}")
    e(f"v_lshrrev_b32 v{VG}, 4, v{VC}")
    e(f"v_and_b32 v{VC}, 15, v{VC}")
    if team:
        e(f"v_lshrrev_b32 v13, 1, v{VG}")
        e(f"v_and_b32 v14, 1, v{VG}")
        e(f"v_lshlrev_b32 v15, 5, v13")
        e(f"v_lshl_add_u32 v15, v14, 3, v15")
    else:
        e(f"v_lshlrev_b32 v15, 3, v{VG}")
    e(f"v_lshlrev_b32 v15, 13, v15")
    e(f"s_lshl_b32 s{S_T0}, s{S_H}, 8")
    e(f"s_and_b32 s{S_T1}, s{S_WAVE}, 1")
    e(f"s_lshl_b32 s{S_T1}, s{S_T1}, 7")
    e(f"s_add_u32 s{S_T1}, s{S_T1}, s{S_T0}")
    e(f"v_lshl_add_u32 v{VQK}, v{VC}, 3, v15")
    e(f"v_add_u32 v{VQK}, s{S_T1}, v{VQK}")
    e(f"v_lshl_add_u32 v{VV}, v{VC}, 4, v15")
    e(f"v_add_u32 v{VV}, s{S_T0}, v{VV}")
    e(f"s_cmp_lt_u32 s{S_WAVE}, 2")
    e(f"s_cselect_b32 s{SRD_QK}, s{P_WQ}, s{P_WK}")
    e(f"s_cselect_b32 s{SRD_QK+1}, s{P_WQ+1}, s{P_WK+1}")
    e(f"s_and_b32 s{SRD_QK+1}, s{SRD_QK+1}, 0xffff")
    e(f"s_mov_b32 s{SRD_QK+2}, 0x400000")
    e(f"s_mov_b32 s{SRD_QK+3}, 0x20000")
    mk_srd(e, SRD_V, P_WV, 0x400000)
    for jj in range(4):
        if team:
            e(f"s_xor_b32 s{S_CB+jj}, s{S_WAVE}, {jj}")
            e(f"s_lshl_b32 s{S_CB+jj}, s{S_CB+jj}, 20")
        else:
            e(f"s_mov_b32 s{S_CB+jj}, {jj << 20}")
    e(f"s_lshl_b32 s{S_T2}, s{S_WAVE}, 20")
    e(f"s_mov_b32 s{S_SELLO}, 0x05040100")
    e(f"s_mov_b32 s{S_SELHI}, 0x07060302")
    e(f"s_lshl_b32 s{S_T3}, s{S_WAVE}, 12")
    e(f"s_add_u32 s{S_T3}, s{S_T3}, {WOL}")
    e(f"v_add_u32 v{VSW0}, s{S_T3}, v{V_L16}")
    e(f"v_add_u32 v{VSW1}, 0x10000, v{VSW0}")
    e(f"s_lshl_b32 s{S_T3}, s{S_WAVE}, 15")
    e(f"s_add_u32 s{S_T3}, s{S_T3}, {WOL}")
    e(f"v_add_u32 v{VWOA}, s{S_T3}, v{V_L16}")
    for jj in range(4):
        e(f"s_lshr_b32 s{S_T3}, s{S_CB+jj}, 8")
        e(f"v_add_u32 v{VSR+jj}, s{S_T3}, v{VWOA}")
    if team:
        mk_srd(e, SRD_O, P_WO, 0x400000)
        e(f"v_lshlrev_b32 v13, 6, v13")
        e(f"v_add_u32 v13, v13, v14")
        e(f"v_lshlrev_b32 v13, 10, v13")
        e(f"v_lshl_add_u32 v{VWO}, v{VC}, 4, v13")
        e(f"s_lshl_b32 s{S_T0}, s{S_H}, 17")
        e(f"s_lshl_b32 s{S_T1}, s{S_WAVE}, 8")
        e(f"s_add_u32 s{S_T0}, s{S_T0}, s{S_T1}")
        e(f"v_add_u32 v{VWO}, s{S_T0}, v{VWO}")

    groups = []
    for b in range(2):
        for hh in range(2):
            base = 128 + (b * 2 + hh) * 32
            def issue(b=b, hh=hh, base=base, regs=None):
                for q in range(4):
                    for bb in range(2):
                        row = cstep * b + rrp(4 * hh + q) + bb
                        e(f"s_add_u32 s{S_T3}, s{S_T2}, {row * 8192}")
                        e(f"buffer_load_dwordx4 {vr(base + (q*2+bb)*4, 4)}, v{VV}, {sr(SRD_V,4)}, s{S_T3} offen")
            def proc(b=b, hh=hh, base=base, regs=None):
                if (b, hh) != (0, 0):
                    e("s_waitcnt lgkmcnt(0)")
                for t in range(8):
                    for q in range(4):
                        ra = base + (q * 2) * 4 + (t >> 1); rb = ra + 4
                        e(f"v_perm_b32 v{TMP + t*4 + q}, v{rb}, v{ra}, s{S_SELHI if t & 1 else S_SELLO}")
                    e(f"ds_write_b128 v{VSW1 if t >= 4 else VSW0}, {vr(TMP + t*4, 4)} offset:{(t & 3)*16384 + b*2048 + hh*1024}")
                if (b, hh) == (1, 1):
                    e("s_waitcnt lgkmcnt(0)")
                    e("s_barrier")
                    for jj in range(4):
                        for bb in range(2):
                            for t in range(2):
                                for h2 in range(2):
                                    j = 2 * jj + bb
                                    e(f"ds_read_b128 {vr(128 + (j*2+t)*8 + h2*4, 4)}, v{VSR+jj} offset:{t*16384 + bb*2048 + h2*1024}")
                        e("s_waitcnt lgkmcnt(0)")
                    e("s_barrier")
                    return "after_v"
            groups.append(dict(n=8, ring=0, issue=issue, proc=proc))
    for j in range(8):
        for rr in range(8):
            def issue(j=j, rr=rr, regs=None):
                for bb in range(2):
                    row = cstep * (j & 1) + rrp(rr) + bb
                    e(f"s_add_u32 s{S_T3}, s{S_CB + (j >> 1)}, {row * 8192}")
                    e(f"buffer_load_dwordx2 {vr(regs + bb*2, 2)}, v{VQK}, {sr(SRD_QK,4)}, s{S_T3} offen")
            def proc(j=j, rr=rr, regs=None):
                for t in range(4):
                    ra = regs + (t >> 1); rb = ra + 2
                    e(f"v_perm_b32 v{TMP + t}, v{rb}, v{ra}, s{S_SELHI if t & 1 else S_SELLO}")
                for t in range(4):
                    e(f"v_accvgpr_write_b32 a{(j*4+t)*8 + rr}, v{TMP + t}")
            groups.append(dict(n=2, ring=4, issue=issue, proc=proc))
    if team:
        for kc in range(2):
            for hh in range(2):
                def issue(kc=kc, hh=hh, regs=None):
                    for q in range(4):
                        rr = 4 * hh + q
                        for bb in range(2):
                            row = 32 * (rr & 1) + 16 * ((rr & 3) >> 1) + 8 * bb + 4 * kc + 2 * (rr >> 2)
                            e(f"s_mov_b32 s{S_T3}, {row * 1024}")
                            e(f"buffer_load_dwordx4 {vr(regs + (q*2+bb)*4, 4)}, v{VWO}, {sr(SRD_O,4)}, s{S_T3} offen")
                def proc(kc=kc, hh=hh, regs=None):
                    e("s_waitcnt lgkmcnt(0)")
                    for t in range(8):
                        for q in range(4):
                            ra = regs + (q * 2) * 4 + (t >> 1); rb = ra + 4
                            e(f"v_perm_b32 v{TMP + t*4 + q}, v{rb}, v{ra}, s{S_SELHI if t & 1 else S_SELLO}")
                        e(f"ds_write_b128 v{VWOA}, {vr(TMP + t*4, 4)} offset:{(t*2+kc)*2048 + hh*1024}")
                groups.append(dict(n=8, ring=32, issue=issue, proc=proc))
    NU = 20
    free = [True] * NU
    def alloc(n):
        u = n // 4
        if u == 0: return -1
        for st in range(0, NU - u + 1):
            if all(free[st:st + u]):
                for k in range(st, st + u): free[k] = False
                return st
        return None
    out = pre_out
    ip = 0
    hooks = {}
    for pp, g in enumerate(groups):
        while ip < len(groups) and out + groups[ip]["n"] <= 60:
            st = alloc(groups[ip]["ring"])
            if st is None: break
            groups[ip]["st"] = st
            groups[ip]["issue"](regs=RING + 4 * st)
            out += groups[ip]["n"]
            ip += 1
        later = sum(groups[k]["n"] for k in range(pp + 1, ip)) + g.get("extra_later", 0)
        e(f"s_waitcnt vmcnt({later})")
        out = later
        r = g["proc"](regs=RING + 4 * g["st"])
        if g["ring"]:
            for k in range(g["st"], g["st"] + g["ring"] // 4): free[k] = True
        if r == "after_v":
            yield_out = yield "after_v"
            if yield_out:
                out += yield_out
                for k in range(pp + 1, ip): groups[k]["extra_later"] = groups[k].get("extra_later", 0) + yield_out
    e("s_waitcnt lgkmcnt(0)")


WO_ORDER = [(t, kc) for tp in range(4) for kc in range(2) for t in (2 * tp, 2 * tp + 1)]
def wo_off(n):
    t, kc = WO_ORDER[n]
    return (t * 2 + kc) * 2048

def smf(e, d, a, b_is_acc, b):
    e(f"v_smfmac_f32_16x16x64_bf16 {vr(d,4)}, {vr(a,4)}, {(ar if b_is_acc else vr)(b,8)}, v{V_IDX}")

def stamp(e, prof, k):
    if prof:
        e(f"s_memtime {sr(S_TS + 2*k, 2)}")

def team_code(e, prof=False, opt=None):
    opt = opt or {}
    WS = sr(SRD_WS, 4); DBG = sr(SRD_DBG, 4)
    e.c("================= TEAM PROLOGUE =================")
    e(f"v_and_b32 v0, 63, v0")
    e(f"v_lshlrev_b32 v{V_L16}, 4, v0")
    for k in range(4): e(f"v_mov_b32 v{20+k}, {SENT:#x}")
    for k in range(4): e(f"v_mov_b32 v{24+k}, 0")
    e(f"s_lshl_b32 s{S_T0}, s{S_H}, 13")
    e(f"s_lshl_b32 s{S_T1}, s{S_WAVE}, 11")
    e(f"s_add_u32 s{S_INBC}, s{S_T0}, {WS_INB}")
    e(f"s_add_u32 s{S_INBR}, s{S_INBC}, s{S_T1}")
    e(f"buffer_store_dwordx4 v[20:23], v{V_L16}, {WS}, s{S_INBR} offen sc1")
    e(f"buffer_store_dwordx4 v[20:23], v{V_L16}, {WS}, s{S_INBR} offen offset:1024 sc1")
    e(f"s_add_u32 s{S_INBR}, s{S_INBR}, {32*8192}")
    e(f"buffer_store_dwordx4 v[20:23], v{V_L16}, {WS}, s{S_INBR} offen sc1")
    e(f"buffer_store_dwordx4 v[20:23], v{V_L16}, {WS}, s{S_INBR} offen offset:1024 sc1")
    e(f"s_add_u32 s{S_INBR}, s{S_INBC}, {2*32*8192}")
    e(f"v_mov_b32 v28, {OOB:#x}")
    e(f"v_cmp_gt_u32 vcc, 256, v{V_L16}")
    e("s_nop 1")
    e(f"v_cndmask_b32 v28, v28, v{V_L16}, vcc")
    e(f"s_lshl_b32 s{S_T0}, s{S_H}, 8")
    e(f"s_add_u32 s{S_T0}, s{S_T0}, {WS_MEM + 8192}")
    e(f"buffer_store_dwordx4 v[20:23], v28, {WS}, s{S_T0} offen sc1")
    e(f"s_lshl_b32 s{S_FLGO}, s{S_H}, 12")
    e(f"s_add_u32 s{S_FLGO}, s{S_FLGO}, {WS_FLG}")
    e(f"s_lshl_b32 s{S_T0}, s{S_H}, 14")
    e(f"s_lshl_b32 s{S_T1}, s{S_WAVE}, 12")
    e(f"s_add_u32 s{S_T0}, s{S_T0}, s{S_T1}")
    e(f"s_add_u32 s{S_T0}, s{S_T0}, {WS_HIST}")
    for k in range(4):
        e(f"buffer_store_dwordx4 v[20:23], v{V_L16}, {WS}, s{S_T0} offen offset:{k*1024} sc1")
    npre = 9
    if not opt.get("no_flag_init"):
        e(f"s_lshl_b32 s{S_T1}, s{S_WAVE}, 10")
        e(f"s_add_u32 s{S_T1}, s{S_T1}, s{S_FLGO}")
        e(f"buffer_store_dwordx4 v[24:27], v{V_L16}, {WS}, s{S_T1} offen sc1")
        npre = 10
    gen = weight_loader(e, True, npre)
    tag = next(gen)
    assert tag == "after_v"
    e(f"v_mov_b32 v13, {OOB:#x}")
    e(f"s_lshl_b32 s{S_T0}, s{S_WAVE}, 10")
    e(f"v_add_u32 v14, s{S_T0}, v{V_L16}")
    e(f"v_cmp_eq_u32 vcc, 0, v14")
    e(f"v_mov_b32 v14, {DBG_INIT}")
    e("s_nop 0")
    e(f"v_cndmask_b32 v13, v13, v14, vcc")
    e(f"v_mov_b32 v14, s{S_ANN}")
    e(f"buffer_atomic_add v14, v13, {DBG}, 0 offen")
    try:
        gen.send(1)
    except StopIteration:
        pass
    stamp(e, prof, 0)
    e.c("---- persistent registers ----")
    e(f"v_lshrrev_b32 v20, 4, v{V_L16}")
    e(f"v_lshrrev_b32 v21, 4, v20")
    e(f"v_and_b32 v20, 15, v20")
    e(f"s_lshl_b32 s{S_T0}, s{S_WAVE}, 11")
    e(f"v_add_u32 v{V_W2}, s{S_T0}, v{V_L16}")
    e(f"s_lshl_b32 s{S_T0}, s{S_WAVE}, 15")
    e(f"s_add_u32 s{S_T0}, s{S_T0}, {WOL}")
    e(f"v_add_u32 v{V_WOA}, s{S_T0}, v{V_L16}")
    e(f"v_bfe_u32 v22, v20, 1, 1")
    e(f"v_lshrrev_b32 v23, 2, v20")
    e(f"v_and_b32 v24, 1, v20")
    e(f"v_lshl_add_u32 v23, v23, 1, v24")
    e(f"v_mov_b32 v24, 0xaaaa")
    e(f"v_mul_u32_u24 v24, v24, v22")
    e(f"v_add_u32 v{V_IDX}, 0x4444, v24")
    def zpos(dst, src):
        e(f"v_add_u32 v25, 4, v{src}")
        e(f"v_bfe_u32 v26, v25, 3, 1")
        e(f"v_and_b32 v25, 7, v25")
        e(f"v_lshl_add_u32 v25, v25, 1, v26")
        e(f"v_mul_u32_u24 v{dst}, 272, v25")
    zpos(V_ZR, 20)
    e(f"v_lshl_add_u32 v{V_ZR}, v21, 5, v{V_ZR}")
    e(f"v_add_u32 v{V_ZR}, {ZI}, v{V_ZR}")
    e(f"s_cmp_lt_u32 s{S_WAVE}, 2")
    e(f"s_cselect_b32 s{S_T0}, 2, 0")
    e(f"v_lshlrev_b32 v27, 2, v21")
    e(f"v_add_u32 v27, s{S_T0}, v27")
    zpos(V_ZW, 27)
    e(f"s_and_b32 s{S_T0}, s{S_WAVE}, 1")
    e(f"s_lshl_b32 s{S_T0}, s{S_T0}, 7")
    e(f"s_add_u32 s{S_T1}, s{S_T0}, {ZI}")
    e(f"v_lshl_add_u32 v{V_ZW}, v20, 3, v{V_ZW}")
    e(f"v_add_u32 v{V_ZW}, s{S_T1}, v{V_ZW}")
    e(f"v_mul_u32_u24 v25, 320, v23")
    e(f"v_lshl_add_u32 v{V_OR}, v21, 5, v25")
    e(f"v_lshl_add_u32 v{V_OR}, v22, 4, v{V_OR}")
    e(f"v_add_u32 v{V_OR}, {MX}, v{V_OR}")
    e(f"v_xor_b32 v26, 1, v22")
    e(f"v_mul_u32_u24 v26, {8*320 + 16}, v26")
    e(f"v_add_u32 v25, v25, v26")
    e(f"v_lshl_add_u32 v25, v21, 4, v25")
    e(f"s_lshl_b32 s{S_T0}, s{S_WAVE}, 6")
    e(f"s_add_u32 s{S_T0}, s{S_T0}, {MX}")
    e(f"v_add_u32 v{V_OW}, s{S_T0}, v25")
    e(f"v_lshlrev_b32 v25, 14, v21")
    e(f"v_lshrrev_b32 v26, 3, v20")
    e(f"v_lshl_add_u32 v25, v26, 13, v25")
    e(f"v_bfe_u32 v26, v20, 2, 1")
    e(f"v_lshl_add_u32 v25, v26, 11, v25")
    e(f"v_and_b32 v26, 3, v20")
    e(f"v_lshl_add_u32 v25, v26, 4, v25")
    e(f"s_lshl_b32 s{S_T0}, s{S_WAVE}, 16")
    e(f"v_add_u32 v{V_PST}, s{S_T0}, v25")
    e(f"v_lshlrev_b32 v25, 10, v23")
    e(f"v_lshl_add_u32 v25, v21, 6, v25")
    e(f"v_lshl_add_u32 v25, v22, 5, v25")
    e(f"s_lshl_b32 s{S_T0}, s{S_WAVE}, 8")
    e(f"v_add_u32 v40, s{S_T0}, v25")
    e(f"v_lshrrev_b32 v25, 1, v20")
    e(f"v_lshlrev_b32 v25, 5, v25")
    e(f"v_and_b32 v26, 1, v20")
    e(f"v_lshl_add_u32 v25, v26, 3, v25")
    e(f"v_lshrrev_b32 v26, 1, v21")
    e(f"v_lshl_add_u32 v25, v26, 4, v25")
    e(f"v_and_b32 v26, 1, v21")
    e(f"v_lshl_add_u32 v25, v26, 2, v25")
    e(f"s_lshr_b32 s{S_T0}, s{S_H}, 3")
    e(f"s_lshl_b32 s{S_T0}, s{S_T0}, 10")
    e(f"s_lshr_b32 s{S_T1}, s{S_WAVE}, 1")
    e(f"s_lshl_b32 s{S_T1}, s{S_T1}, 12")
    e(f"s_add_u32 s{S_T0}, s{S_T0}, s{S_T1}")
    e(f"s_and_b32 s{S_T1}, s{S_H}, 1")
    e(f"s_lshl_b32 s{S_T1}, s{S_T1}, 9")
    e(f"s_add_u32 s{S_T0}, s{S_T0}, s{S_T1}")
    e(f"s_and_b32 s{S_T1}, s{S_WAVE}, 1")
    e(f"s_lshl_b32 s{S_T1}, s{S_T1}, 8")
    e(f"s_add_u32 s{S_T0}, s{S_T0}, s{S_T1}")
    e(f"s_and_b32 s{S_T1}, s{S_H}, 6")
    e(f"s_lshl_b32 s{S_T1}, s{S_T1}, 5")
    e(f"s_add_u32 s{S_T0}, s{S_T0}, s{S_T1}")
    e(f"v_add_u32 v25, s{S_T0}, v25")
    e(f"v_mov_b32 v26, {OOB:#x}")
    e(f"v_cmp_gt_u32 vcc, 4, v20")
    e("s_nop 1")
    e(f"v_cndmask_b32 v{V_MPUB}, v26, v25, vcc")
    for k in range(24): e(f"v_accvgpr_read_b32 v{64+k}, a{8+k}")
    e("s_nop 1")
    for n in range(13, 16):
        for hh in range(2):
            e(f"ds_read_b128 {ar(8 + (n-13)*8 + 4*hh, 4)}, v{V_WOA} offset:{wo_off(n) + hh*1024}")
    e("s_waitcnt lgkmcnt(0)")
    for n in range(13, 16):
        for hh in range(2):
            e(f"ds_write_b128 v{V_WOA}, {vr(64 + (n-13)*8 + 4*hh, 4)} offset:{wo_off(n) + hh*1024}")
    e(f"v_lshrrev_b32 v25, 2, v20")
    e(f"v_lshl_add_u32 v25, v22, 2, v25")
    e(f"v_and_b32 v24, 1, v20")
    e(f"v_lshlrev_b32 v24, 4, v24")
    e(f"v_mov_b32 v26, 0x3f80")
    e(f"v_lshlrev_b32 v24, v24, v26")
    for k in range(4):
        e(f"v_cmp_eq_u32 vcc, {k}, v25")
        e("s_nop 1")
        e(f"v_cndmask_b32 v{28+k}, 0, v24, vcc")
    e(f"ds_write_b128 v{V_L16}, v[28:31] offset:{CONSTL}")
    e(f"s_mov_b32 s{S_C}, 0x3e0293ee")
    e(f"s_mov_b32 s{S_C+1}, 0x3e0293ee")
    e(f"s_mov_b32 s{S_STEP}, 0")
    e(f"s_mov_b32 s{S_LDE}, 0")
    e(f"s_mov_b32 s{S_LDL}, 0")
    e(f"s_mov_b32 s{S_ONE}, 0x3f803f80")
    e(f"s_mov_b32 s{S_ONE+1}, 0x3f803f80")
    e(f"s_mov_b32 s{S_SENT}, {SENT:#x}")
    e(f"s_mov_b32 s{S_SENT+1}, {SENT:#x}")
    e(f"s_lshl_b32 s{S_T0}, s{S_WAVE}, 12")
    e(f"s_add_u32 m0, s{S_T0}, {KVL}")
    e(f"s_lshl_b32 s{S_KVOFF}, s{S_H}, 14")
    e(f"s_add_u32 s{S_KVOFF}, s{S_KVOFF}, s{S_T0}")
    e(f"s_add_u32 s{S_KVOFF}, s{S_KVOFF}, {WS_KV}")
    e(f"s_lshl_b32 s{S_INBP}, s{S_H}, 6")
    e(f"s_add_u32 s{S_INBP}, s{S_INBP}, {WS_INB}")
    e(f"s_mov_b32 s{S_MEMN}, {WS_MEM + 8192}")
    e(f"s_mov_b32 s{S_MEMR}, {WS_MEM + 16384}")
    e(f"s_mov_b32 s{S_HIST}, {OOB:#x}")
    e(f"s_mov_b32 s{S_TOT}, 0")
    if prof:
        e(f"s_lshl_b32 s{S_PROF}, s{S_H}, 2")
        e(f"s_add_u32 s{S_PROF}, s{S_PROF}, s{S_WAVE}")
        e(f"s_lshl_b32 s{S_PROF}, s{S_PROF}, 12")
        e(f"s_add_u32 s{S_PROF}, s{S_PROF}, {WS_PROF}")
    mk_srd(e, SRD_T, P_MEM0, 8192)
    for b in range(2):
        for k in range(2):
            e(f"buffer_load_dwordx2 {vr(V_M + 4*b + 2*k, 2)}, v40, {sr(SRD_T,4)}, 0 offen offset:{8*b + 16*k}")
    e(f"v_lshrrev_b32 v{V_TMP}, 2, v{V_L16}")
    lw = e.label("initw")
    e(f"{lw}:")
    e(f"v_mov_b32 v20, {DBG_INIT}")
    e(f"buffer_load_dword v21, v20, {DBG}, 0 offen sc1")
    e(f"buffer_load_dword v{V_FLG}, v{V_TMP}, {WS}, s{S_FLGO} offen sc1")
    e(f"s_add_u32 s{S_TOT}, s{S_TOT}, 1")
    e(f"s_cmp_gt_u32 s{S_TOT}, 0x100000")
    e(f"s_cbranch_scc1 L_team_fail")
    e("s_waitcnt vmcnt(0)")
    e(f"v_readfirstlane_b32 s{S_T0}, v21")
    e(f"v_cmp_ne_u32 {sr(S_MASK,2)}, 0, v{V_FLG}")
    e(f"s_and_b32 s{S_T0}, s{S_T0}, 0xffff")
    e(f"s_cmp_lt_u32 s{S_T0}, 32")
    e(f"s_cbranch_scc1 {lw}")
    e(f"s_and_b32 s{S_T0}, s{S_MASK}, 3")
    e(f"s_cmp_lg_u32 s{S_T0}, 3")
    e(f"s_cbranch_scc1 {lw}")
    for k in range(4):
        e(f"buffer_load_dwordx4 v{V_L16}, {WS}, s{S_KVOFF} offen offset:{k*1024} sc1 lds")
    e(f"s_add_u32 s{S_KVOFF}, s{S_KVOFF}, {32*16384}")
    e("s_waitcnt vmcnt(0) lgkmcnt(0)")
    e("s_barrier")
    e(f"v_readfirstlane_b32 s{S_T0}, v21")
    e(f"s_cmp_gt_u32 s{S_T0}, 0xffff")
    e(f"s_cbranch_scc1 L_slow_pre")
    step_loop(e, "fast", "", prof, opt)
    step_loop(e, "slow", " sc1", False, opt)
    e("L_team_fail:")
    e(f"v_mov_b32 v20, {DBG_ERR}")
    e(f"v_mov_b32 v21, s{S_STEP}")
    e(f"v_add_u32 v21, 0x100, v21")
    e(f"buffer_store_dword v21, v20, {DBG}, 0 offen sc1")
    e("s_waitcnt vmcnt(0)")
    e("s_endpgm")


def idle_work(e, part):
    if 0 in part:
        e(f"ds_read_b128 {vr(V_S,4)}, v{V_L16} offset:{CONSTL}")
        for t in range(1, 4):
            for hh in range(2):
                e(f"ds_read_b128 {vr(V_M + 8*t + 4*hh, 4)}, v{V_WOA} offset:{wo_off(12 + t) + hh*1024}")
    if 1 in part:
        for k in range(0, 8, 2):
            e(f"v_mov_b64 {vr(V_V + k, 2)}, 0")
        for jj in range(1, 4):
            e(f"v_xor_b32 v{V_S + 7 + jj}, {jj*2048}, v{V_W2}")
        e(f"v_mfma_f32_16x16x1_4b_f32 {vr(V_A,16)}, v{V_V}, v{V_V}, 0")
        e(f"v_lshrrev_b32 v{V_TMP}, 2, v{V_L16}")
    if 2 in part:
        for f in range(8):
            e(f"ds_read_b128 {vr(V_KX + 4*f, 4)}, v{V_L16} offset:{KVL + f*1024}")
        for t in range(2):
            e(f"ds_read_b128 {vr(V_VX + 4*t, 4)}, v{V_W2} offset:{KVL + 8192 + t*1024}")
    if 3 in part:
        e(f"v_mov_b64 {vr(V_S,2)}, {sr(S_SENT,2)}")
        e(f"v_mov_b64 {vr(V_S+2,2)}, {sr(S_SENT,2)}")

def adv_state(e):
    e(f"s_add_u32 s{S_STEP}, s{S_STEP}, 1")
    e(f"s_lshl_b32 s{S_HIST}, s{S_STEP}, 13")
    e(f"s_add_u32 s{S_HIST}, s{S_HIST}, {WS_HIST}")
    e(f"s_add_u32 s{S_T1}, s{S_STEP}, 1")
    e(f"s_cmp_lt_u32 s{S_T1}, 64")
    e(f"s_cselect_b32 s{S_T0}, {32*16384}, 0")
    e(f"s_cselect_b32 s{S_SEGN}, s{S_T1}, 63")
    e(f"s_add_u32 s{S_KVOFF}, s{S_KVOFF}, s{S_T0}")
    e(f"s_mov_b32 s{S_T3}, s{S_MEMN}")
    e(f"s_lshl_b32 s{S_T1}, s{S_WAVE}, 10")
    e(f"s_add_u32 s{S_LDE}, s{S_T3}, s{S_T1}")
    e(f"s_add_u32 s{S_LDL}, s{S_LDE}, 4096")
    e(f"s_mov_b32 s{S_MEMN}, s{S_MEMR}")
    e(f"s_add_u32 s{S_MEMR}, s{S_MEMR}, 8192")
    e(f"s_and_b32 s{S_MEMR}, s{S_MEMR}, {~(4*8192) & 0xffffffff:#x}")

def adv_slots(e):
    e(f"s_mov_b32 s{S_INBR}, s{S_INBC}")
    e(f"s_mov_b32 s{S_T0}, {32*8192}")
    e(f"s_cmp_ge_u32 s{S_INBP}, {WS_INB + 2*32*8192}")
    e(f"s_cselect_b32 s{S_T0}, {(-2*32*8192) & 0xffffffff:#x}, s{S_T0}")
    e(f"s_add_u32 s{S_INBP}, s{S_INBP}, s{S_T0}")
    e(f"s_add_u32 s{S_INBC}, s{S_INBC}, s{S_T0}")

def step_loop(e, name, sc, prof, opt):
    WS = sr(SRD_WS, 4); DBG = sr(SRD_DBG, 4)
    PL = " sc1"
    nobg = opt.get("nobg", 0)
    M = lambda j: V_M + 4 * j
    QK = lambda j, t: (j * 4 + t) * 8
    WV = lambda j, t: V_WV + (j * 2 + t) * 8
    A = lambda t: V_A + 4 * t
    SEL, RA, H = V_S, V_S + 4, V_VM
    PUB = V_S + 11
    farpub = f"buffer_store_dword v{PUB}, v{V_MPUB}, {WS}, s{S_HIST} offen sc1"
    def hadd(r):
        return [f"v_add_f32 v{r}, v{r}, v{r+2}", f"v_add_f32 v{r+1}, v{r+1}, v{r+3}"]
    def pkadd(r):
        return f"v_pk_add_f32 {vr(r,2)}, {vr(r,2)}, {vr(r+2,2)}"
    def S(d, a, acc, b):
        return f"v_smfmac_f32_16x16x64_bf16 {vr(d,4)}, {vr(a,4)}, {(ar if acc else vr)(b,8)}, v{V_IDX}"
    def qk(j, t):
        return S(A(t), M(j), False, V_M + 8 * t) if (j == 0 and t > 0) else S(A(t), M(j), True, QK(j, t))
    def vv(j, t): return S(V_V + 4 * t, M(j), False, WV(j, t))
    def st(k): return f"s_memtime {sr(S_TS + 2*k, 2)}" if prof else None
    def gap(n):
        while n > 0:
            e(f"s_nop {min(n, 16) - 1}"); n -= 16
    def weave(ms, fs):
        assert all(k < len(ms) for k in fs), (name, len(ms), list(fs))
        for i, m in enumerate(ms):
            e(m)
            for x in (fs.get(i) or []):
                if x: e(x)
    ldE = f"buffer_load_dwordx4 {vr(M(0),4)}, v{V_L16}, {WS}, s{S_LDE} offen{PL}"
    ldL = f"buffer_load_dwordx4 {vr(M(1),4)}, v{V_L16}, {WS}, s{S_LDL} offen{PL}"
    e.c(f"================= TEAM LOOP ({name}) =================")
    e(f"L_{name}_pre:")
    idle_work(e, (0, 1))
    e("s_waitcnt lgkmcnt(0)")
    idle_work(e, (2, 3))
    e("s_nop 15")
    if opt.get("light"):
        e(f"s_memtime {sr(S_TS,2)}")
        e(f"s_memrealtime {sr(S_TS+2,2)}")
        e("s_waitcnt lgkmcnt(0)")
    e(f"s_branch L_{name}_top0")
    e(f".p2align 6")
    e(f"L_{name}_top:")
    e(ldL)
    e(f"L_{name}_top0:")
    stamp(e, prof, 0)
    vq = [(j, t) for j in (0, 2, 4, 6, 1, 3, 5, 7) for t in range(2)]
    def vs(n): return [vv(*vq.pop(0)) for _ in range(n)]
    e(f"ds_write_b128 v{V_W2}, {vr(M(0),4)} offset:{MX}")
    e(qk(0, 0))
    e("s_waitcnt lgkmcnt(1)")
    for t in range(1, 4): e(qk(0, t))
    e("s_waitcnt lgkmcnt(0)")
    e("s_barrier")
    stamp(e, prof, 1)
    for jj in range(1, 4):
        e(f"ds_read_b128 {vr(M(2*jj),4)}, v{V_S+7+jj} offset:{MX}")
    for x in vs(2): e(x)
    nvE = opt.get("nvE", 2)
    e("s_waitcnt lgkmcnt(2)")
    ms = [qk(j, t) for j in (2, 4, 6) for t in range(4)] + vs(nvE)
    pL = opt.get("pL", 7)
    fs = {3: ["s_waitcnt lgkmcnt(1)"], 6: ["s_waitcnt lgkmcnt(0)"]}
    fs.setdefault(pL, []).append("s_waitcnt vmcnt(0)")
    fs[pL].append(f"ds_write_b128 v{V_W2}, {vr(M(1),4)} offset:{MX+1024}")
    fs.setdefault(pL + 1, []).append(f"v_maximum3_f32 v{RA}, v{M(1)}, v{M(1)+1}, v{M(1)+2}")
    fs.setdefault(pL + 2, []).append(f"v_cmp_u_f32 vcc, v{RA}, v{M(1)+3}")
    fs.setdefault(pL + 3, []).append(f"s_cbranch_vccnz L_{name}_Lr")
    fs[pL + 3].append(f"L_{name}_Lok:")
    weave(ms, fs)
    e("s_waitcnt lgkmcnt(0)")
    e("s_barrier")
    stamp(e, prof, 2)
    dma = [f"buffer_load_dwordx4 v{V_L16}, {WS}, s{S_KVOFF} offen offset:{k*1024} sc1 lds" for k in range(4)] + [
        f"buffer_load_dword v{V_FLG}, v{V_TMP}, {WS}, s{S_FLGO} offen sc1"]
    if nobg & 1: dma = [None] * 5
    rst = [f"buffer_store_dwordx4 {vr(V_S,4)}, v{V_W2}, {WS}, s{S_INBR} offen{sc}",
           f"buffer_store_dwordx4 {vr(V_S,4)}, v{V_W2}, {WS}, s{S_INBR} offen offset:1024{sc}",
           f"buffer_store_dword v{V_S}, v{V_MPUB}, {WS}, s{S_MEMR} offen{sc}"]
    rdL = [f"ds_read_b128 {vr(M(2*jj+1),4)}, v{V_S+7+jj} offset:{MX+1024}" for jj in range(1, 4)]
    KD = V_S + 8
    e(rdL[0])
    ms = [qk(1, t) for t in range(4)] + [qk(j, t) for j in (3, 5, 7) for t in (0, 1)] + [qk(j, t) for j in (3, 5, 7) for t in (2, 3)]
    a0, a1, a2, a3 = hadd(A(0)), hadd(A(1)), hadd(A(2)), hadd(A(3))
    fs = {0: [rdL[1]], 1: [rdL[2]], 2: [dma[0]], 3: ["s_waitcnt lgkmcnt(2)"], 4: [dma[1]], 5: ["s_waitcnt lgkmcnt(0)"],
          6: [dma[2]], 7: [farpub], 8: [dma[3]], 9: [dma[4]], 10: [a0[0]], 11: [a0[1]], 12: [a1[0]], 13: [a1[1]],
          14: [f"v_cvt_pk_bf16_f32 v{KD}, v{A(0)}, v{A(1)}"], 15: [f"v_cvt_pk_bf16_f32 v{KD+2}, v{A(0)+1}, v{A(1)+1}", st(3)]}
    weave(ms, fs)
    crit = a2 + a3 + [f"v_cvt_pk_bf16_f32 v{KD+1}, v{A(2)}, v{A(3)}",
                      f"ds_write_b64 v{V_ZW}, {vr(KD,2)}",
                      f"v_cvt_pk_bf16_f32 v{KD+3}, v{A(2)+1}, v{A(3)+1}",
                      f"ds_write_b64 v{V_ZW}, {vr(KD+2,2)} offset:544"]
    c1 = opt.get("c1", [4, 4])
    for n in c1:
        e(vs(1)[0])
        for _ in range(n): e(crit.pop(0))
    assert not crit
    ms = vs(opt.get("v1", 4))
    rg = opt.get("rg", 1)
    weave(ms, {} if rg else {0: [rst[0]], 2: [rst[1]]})
    e(f"s_waitcnt lgkmcnt(0)")
    e("s_barrier")
    zr = [f"ds_read_b128 {vr(A(ks),4)}, v{V_ZR} offset:{128*(ks>>1) + 16*(ks&1)}" for ks in range(4)]
    e(zr[0]); e(zr[1])
    ms = vs(len(vq))
    weave(ms, {0: [zr[2]], 1: [zr[3], rst[2]]})
    stamp(e, prof, 4)
    T0, T1, TM = V_S, V_S + 4, V_S + 8
    order = WO_ORDER
    stage = {}
    def wo_read(n, reg):
        stage[n] = reg
        return [f"ds_read_b128 {vr(reg + 4*hh, 4)}, v{V_WOA} offset:{wo_off(n) + hh*1024}" for hh in range(2)]
    pre = []
    for n in range(4): pre += wo_read(n, V_M + 8 * n)
    zs = [f"v_mov_b32 v{V_VM+1}, 0", f"v_mov_b32 v{V_VM+3}, 0", f"v_mov_b32 v{V_PM+1}, 0"]
    vfin = hadd(V_V) + hadd(V_V + 4) + [
            f"v_cvt_pk_bf16_f32 v{V_VM}, v{V_V}, v{V_V+1}",
            f"v_cvt_pk_bf16_f32 v{V_VM+2}, v{V_V+4}, v{V_V+5}"]
    e("s_waitcnt lgkmcnt(0)")
    k = 0
    for ks in range(4):
        c = lambda r: ("0" if ks == 0 else vr(r, 4))
        for (d, a) in ((T0, V_KX + 4 * ks), (T1, V_KX + 16 + 4 * ks), (TM, A(ks))):
            e(f"v_mfma_f32_16x16x32_bf16 {vr(d,4)}, {vr(a,4)}, {vr(A(ks),4)}, {c(d)}")
            if pre: e(pre.pop(0))
            if k < 2 or k == 9: e(zs.pop(0))
            if k >= 2 and vfin: e(vfin.pop(0))
            k += 1
    assert not vfin and not pre, (vfin, pre)
    e("s_nop 3")
    LACC, ONES, ST4 = V_A, V_A + 4, V_A + 8
    MXR, TT = V_PM, V_TMP
    e(f"v_max3_f32 v{TT}, v{T0}, v{T0+1}, v{T0+2}")
    e(f"v_max3_f32 v{TT}, v{TT}, v{T0+3}, v{T1}")
    e(f"v_max3_f32 v{MXR}, v{T1+1}, v{T1+2}, v{T1+3}")
    e(f"v_max_f32 v{TT}, v{TT}, v{MXR}")
    e(f"v_max3_f32 v{MXR}, v{TT}, v{TM}, v{TM+1}")
    e(f"v_max3_f32 v{TT}, v{TT}, v{TM}, v{TM+1}")
    p5 = wo_read(4, ST4)
    e(p5[0]); e(p5[1])
    e(f"v_permlane32_swap_b32 v{MXR}, v{TT}")
    e(f"v_max_f32 v{TT}, v{TT}, v{MXR}")
    e(f"v_max_f32 v{MXR}, v{TT}, v{MXR}")
    e(f"v_mov_b64 {vr(ONES,2)}, {sr(S_ONE,2)}")
    e(f"v_mov_b64 {vr(ONES+2,2)}, {sr(S_ONE,2)}")
    e(f"v_permlane16_swap_b32 v{MXR}, v{TT}")
    e(f"v_max_f32 v{TT}, v{TT}, v{MXR}")
    e(f"v_mul_f32 v{TM+2}, s{S_C}, v{TT}")
    NM = TM + 2
    def pkf(r): e(f"v_pk_fma_f32 {vr(r,2)}, {vr(r,2)}, {sr(S_C,2)}, {vr(NM,2)} op_sel_hi:[1,1,0] neg_lo:[0,0,1] neg_hi:[0,0,1]")
    pkf(TM); pkf(T0); pkf(T0 + 2); pkf(T1); pkf(T1 + 2)
    e(f"v_exp_f32 v{TM}, v{TM}")
    e(f"v_exp_f32 v{TM+1}, v{TM+1}")
    e(f"v_exp_f32 v{T0}, v{T0}")
    e(f"v_cvt_pk_bf16_f32 v{V_PM}, v{TM}, v{TM+1}")
    e(f"v_exp_f32 v{T0+1}, v{T0+1}")
    e(f"v_exp_f32 v{T0+2}, v{T0+2}")
    OA = V_V
    e(f"v_mfma_f32_16x16x16_bf16 {vr(LACC,4)}, {vr(ONES,2)}, {vr(V_PM,2)}, 0")
    e(f"v_exp_f32 v{T0+3}, v{T0+3}")
    e(f"v_cvt_pk_bf16_f32 v{TM}, v{T0}, v{T0+1}")
    e(f"v_mfma_f32_16x16x16_bf16 {vr(OA,4)}, {vr(V_VM,2)}, {vr(V_PM,2)}, 0")
    e(f"v_exp_f32 v{T1}, v{T1}")
    e(f"v_cvt_pk_bf16_f32 v{TM+1}, v{T0+2}, v{T0+3}")
    e(f"v_mfma_f32_16x16x16_bf16 {vr(OA+4,4)}, {vr(V_VM+2,2)}, {vr(V_PM,2)}, 0")
    e(f"v_exp_f32 v{T1+1}, v{T1+1}")
    e(f"v_exp_f32 v{T1+2}, v{T1+2}")
    e(f"v_exp_f32 v{T1+3}, v{T1+3}")
    e(f"v_cvt_pk_bf16_f32 v{TM+2}, v{T1}, v{T1+1}")
    e(f"v_cvt_pk_bf16_f32 v{TM+3}, v{T1+2}, v{T1+3}")
    p6 = wo_read(5, T0)
    e(p6[0]); e(p6[1])
    PX = TM
    p8 = wo_read(8, V_VM)
    e(f"v_mfma_f32_16x16x32_bf16 {vr(LACC,4)}, {vr(ONES,4)}, {vr(PX,4)}, {vr(LACC,4)}")
    e(p8[0]); e(f"v_mov_b32 v{V_TMP}, 0")
    e(f"v_mfma_f32_16x16x32_bf16 {vr(OA,4)}, {vr(V_VX,4)}, {vr(PX,4)}, {vr(OA,4)}")
    e(p8[1])
    e(f"v_mfma_f32_16x16x32_bf16 {vr(OA+4,4)}, {vr(V_VX+4,4)}, {vr(PX,4)}, {vr(OA+4,4)}")
    e(f"v_rcp_f32 v{LACC}, v{LACC}")
    e(f"s_add_u32 s{S_T0}, s{S_INBP}, 4096")
    def pkm(r): e(f"v_pk_mul_f32 {vr(r,2)}, {vr(r,2)}, {vr(LACC,2)} op_sel_hi:[1,0]")
    pkm(OA); pkm(OA + 2)
    e(f"v_cvt_pk_bf16_f32 v{PX}, v{OA}, v{OA+1}")
    e(f"v_cvt_pk_bf16_f32 v{PX+1}, v{OA+2}, v{OA+3}")
    pkm(OA + 4); pkm(OA + 6)
    e(f"v_cvt_pk_bf16_f32 v{PX+2}, v{OA+4}, v{OA+5}")
    e(f"v_cvt_pk_bf16_f32 v{PX+3}, v{OA+6}, v{OA+7}")
    stamp(e, prof, 5)
    e(f"ds_write_b128 v{V_OW}, {vr(PX,4)}")
    e(f"v_mfma_f32_32x32x1_2b_f32 {vr(V_KX,32)}, v{V_TMP}, v{V_TMP}, 0")
    ng = opt.get("ng", 1)
    gl = [wo_read(6, V_A), wo_read(7, V_V)]
    for k in range(ng):
        for x in gl[k]: e(x)
    if rg:
        e(f"v_mov_b64 {vr(PX,2)}, {sr(S_SENT,2)}")
        e(f"v_mov_b64 {vr(PX+2,2)}, {sr(S_SENT,2)}")
        e(f"buffer_store_dwordx4 {vr(PX,4)}, v{V_W2}, {WS}, s{S_INBR} offen{sc}")
    e(f"s_waitcnt lgkmcnt({2*ng})")
    e("s_barrier")
    OF = V_VX
    e(f"ds_read_b128 {vr(OF,4)}, v{V_OR}")
    e(f"ds_read_b128 {vr(OF+4,4)}, v{V_OR} offset:128")
    nlate = 0
    for k in range(ng, 2):
        for x in gl[k]: e(x); nlate += 1
    if rg:
        e(f"buffer_store_dwordx4 {vr(PX,4)}, v{V_W2}, {WS}, s{S_INBR} offen offset:1024{sc}")
    ACC = lambda t: V_KX + 4 * t
    e(f"s_cmp_lt_u32 s{S_WAVE}, 2")
    e(f"s_waitcnt lgkmcnt({1 + nlate})")
    stamp(e, prof, 6)
    def cv(tp):
        o = (PX if tp < 2 else ACC(0)) + (tp & 1)
        return [f"v_cvt_pk_bf16_f32 v{o}, v{ACC(2*tp)}, v{ACC(2*tp+1)}",
                f"v_cvt_pk_bf16_f32 v{o+2}, v{ACC(2*tp)+1}, v{ACC(2*tp+1)+1}"]
    ms = []
    rd = []
    for n in range(16):
        t, kc = order[n]
        ms.append(S(ACC(t), OF + 4 * kc, True, 8 + (n - 13) * 8) if n >= 13 else S(ACC(t), OF + 4 * kc, False, stage[n]))
        if n < 4: rd += wo_read(9 + n, stage[n])
    pA = hadd(ACC(0)) + hadd(ACC(1)) + cv(0) + hadd(ACC(2)) + hadd(ACC(3)) + cv(1) + [
        f"buffer_store_dwordx4 {vr(PX,4)}, v{V_PST}, {WS}, s{S_INBP} offen{sc}"]
    fs = {n: [rd[n]] for n in range(8)}
    fs[1].append(f"s_waitcnt lgkmcnt({nlate + 2})")
    if nlate: fs[5].append(f"s_waitcnt lgkmcnt(6)")
    cntA = opt.get("cntA", {5: 1, 6: 1, 7: 2, 8: 2, 9: 3, 10: 4})
    for n in sorted(cntA):
        for _ in range(cntA[n]): fs.setdefault(n, []).append(pA.pop(0))
    assert not pA
    fs.setdefault(8, []).append("s_waitcnt lgkmcnt(4)")
    fs.setdefault(10, []).append("s_waitcnt lgkmcnt(0)")
    h4, h5 = hadd(ACC(4)), hadd(ACC(5))
    fs[12] = [h4[0]]; fs[13] = [h4[1]]; fs[14] = [h5[0]]; fs[15] = [h5[1]] + cv(2)
    weave(ms, fs)
    e(pkadd(ACC(6)))
    e("s_nop 1")
    e(pkadd(ACC(7)))
    for x in cv(3): e(x)
    stB = f"buffer_store_dwordx4 {vr(ACC(0),4)}, v{V_PST}, {WS}, s{S_T0} offen{sc}"
    D2 = opt.get("D2", 3)
    def r1():
        e(f"buffer_load_dwordx4 {vr(H,4)}, v{V_W2}, {WS}, s{S_INBC} offen{PL}")
        e(f"buffer_load_dwordx4 {vr(H+4,4)}, v{V_W2}, {WS}, s{S_INBC} offen offset:1024{PL}")
    nyoung = 1 + 3
    def reduce_(tag, n):
        e(f"s_waitcnt vmcnt({n+1})")
        e(f"v_mfma_f32_16x16x32_bf16 {vr(RA,4)}, {vr(SEL,4)}, {vr(H,4)}, 0")
        e(f"s_waitcnt vmcnt({n})")
        e(f"v_mfma_f32_16x16x32_bf16 {vr(RA,4)}, {vr(SEL,4)}, {vr(H+4,4)}, {vr(RA,4)}")
        stamp(e, prof, 8)
        e("s_nop 7")
        e(f"v_cmp_u_f32 vcc, v{RA}, v{RA+1}")
        e(f"v_add_f32_dpp v{RA}, v{RA}, v{RA} row_ror:4 row_mask:0xf bank_mask:0xf")
        e(f"v_add_f32_dpp v{RA+1}, v{RA+1}, v{RA+1} row_ror:4 row_mask:0xf bank_mask:0xf")
        e(f"s_cbranch_vccnz L_{name}_{tag}r")
        e(f"L_{name}_{tag}ok:")
        e(f"v_add_f32_dpp v{RA}, v{RA}, v{RA} row_ror:8 row_mask:0xf bank_mask:0xf")
        e(f"v_add_f32_dpp v{RA+1}, v{RA+1}, v{RA+1} row_ror:8 row_mask:0xf bank_mask:0xf")
        e(f"v_cvt_pk_bf16_f32 v{PUB}, v{RA}, v{RA+1}")
        e(f"buffer_store_dword v{PUB}, v{V_MPUB}, {WS}, s{S_T3} offen{sc}")
        stamp(e, prof, 9)
        if prof: e(f"s_mov_b32 s{S_T2}, s{S_RETRY}")
        e(f"s_mov_b32 s{S_RETRY}, 0")
    def reduce_retry(tag, n):
        e(f"L_{name}_{tag}r:")
        r1()
        e(f"s_add_u32 s{S_RETRY}, s{S_RETRY}, 1")
        e(f"s_waitcnt vmcnt({n})")
        e(f"v_mfma_f32_16x16x32_bf16 {vr(RA,4)}, {vr(SEL,4)}, {vr(H,4)}, 0")
        e(f"v_mfma_f32_16x16x32_bf16 {vr(RA,4)}, {vr(SEL,4)}, {vr(H+4,4)}, {vr(RA,4)}")
        e(f"s_and_b32 s{S_T0}, s{S_RETRY}, 63")
        e("s_nop 6")
        e(f"v_cmp_u_f32 vcc, v{RA}, v{RA+1}")
        e(f"v_add_f32_dpp v{RA}, v{RA}, v{RA} row_ror:4 row_mask:0xf bank_mask:0xf")
        e(f"v_add_f32_dpp v{RA+1}, v{RA+1}, v{RA+1} row_ror:4 row_mask:0xf bank_mask:0xf")
        e(f"s_cbranch_vccz L_{name}_{tag}ok")
        e(f"s_cbranch_scc1 L_{name}_{tag}r")
        exact(e, H, 8)
        e(f"s_cbranch_scc1 L_{name}_{tag}r")
        e(f"v_mfma_f32_16x16x32_bf16 {vr(RA,4)}, {vr(SEL,4)}, {vr(H,4)}, 0")
        e(f"v_mfma_f32_16x16x32_bf16 {vr(RA,4)}, {vr(SEL,4)}, {vr(H+4,4)}, {vr(RA,4)}")
        e("s_nop 7")
        e(f"v_add_f32_dpp v{RA}, v{RA}, v{RA} row_ror:4 row_mask:0xf bank_mask:0xf")
        e(f"v_add_f32_dpp v{RA+1}, v{RA+1}, v{RA+1} row_ror:4 row_mask:0xf bank_mask:0xf")
        e(f"s_branch L_{name}_{tag}ok")
    def kvcheck(tag):
        e(f"s_cmp_eq_u32 s{S_STEP}, 63")
        e(f"s_cbranch_scc1 L_{name}_exit")
        e(f"v_cmp_ne_u32 {sr(S_MASK,2)}, 0, v{V_FLG}")
        adv_slots(e)
        e(f"s_bitcmp0_b64 {sr(S_MASK,2)}, s{S_SEGN}")
        e(f"s_cbranch_scc1 L_{name}_{tag}kv")
        e(f"L_{name}_{tag}kvok:")
    def kvpoll(tag):
        e(f"L_{name}_{tag}kv:")
        e(f"buffer_load_dword v{V_FLG}, v{V_TMP}, {WS}, s{S_FLGO} offen sc1")
        e(f"s_add_u32 s{S_TOT}, s{S_TOT}, 1")
        e(f"s_cmp_gt_u32 s{S_TOT}, 0x100000")
        e(f"s_cbranch_scc1 L_team_fail")
        e("s_waitcnt vmcnt(0)")
        e(f"v_cmp_ne_u32 {sr(S_MASK,2)}, 0, v{V_FLG}")
        e("s_nop 3")
        e(f"s_bitcmp0_b64 {sr(S_MASK,2)}, s{S_SEGN}")
        e(f"s_cbranch_scc1 L_{name}_{tag}kv")
        e(f"s_branch L_{name}_{tag}kvok")
    D1l = opt.get("D1l", 1); D1e = opt.get("D1e", 1)
    agg = opt.get("agg", 0)
    if agg:
        D1e = 2
        e(f"s_cbranch_scc0 L_{name}_late")
        gap(opt.get("d0e", 0))
        r1()
        e(f"s_waitcnt vmcnt({nyoung + 2})")
        e("s_barrier")
        e(stB)
        stamp(e, prof, 7)
        idle_work(e, (0, 1))
        adv_state(e)
        gap(opt.get("d1e", 0))
        r1()
        e(f"s_mov_b32 s{S_RETRY}, 0")
        e("s_waitcnt lgkmcnt(0)")
        reduce_("e", 3)
        idle_work(e, (2,))
    else:
        e(stB)
        stamp(e, prof, 7)
        idle_work(e, (0,))
        e(f"s_waitcnt vmcnt({nyoung + 1})")
        e("s_barrier")
        idle_work(e, (1,))
        e(f"s_cbranch_scc0 L_{name}_late")
        gap(opt.get("d1e", 0))
        r1()
        adv_state(e)
        e(f"s_mov_b32 s{S_RETRY}, 0")
        e("s_waitcnt lgkmcnt(0)")
        idle_work(e, (2,))
        for k in range(D1e - 1): r1()
        reduce_("e", 2 * (D1e - 1))
        idle_work(e, (3,))
        kvcheck("e")
    gap(opt.get("d2e", 12))
    e(ldE)
    if agg:
        idle_work(e, (3,))
        kvcheck("e")
        gap(opt.get("g2", 20) - 16)
    else:
        gap(opt.get("g2", 20))
    e(f"L_{name}_h2j:")
    for k in range(D2 - 1):
        if k: gap(opt.get("g2", 20))
        e(ldE)
    e(f"s_waitcnt vmcnt({D2-1})")
    e(f"L_{name}_h2c:")
    e(f"v_maximum3_f32 v{RA}, v{M(0)}, v{M(0)+1}, v{M(0)+2}")
    e(f"v_cmp_u_f32 vcc, v{RA}, v{M(0)+3}")
    e(f"s_cbranch_vccz L_{name}_{'h2ok' if prof else 'top'}")
    e(f"L_{name}_h2l:")
    e(ldE)
    e(f"s_add_u32 s{S_RETRY}, s{S_RETRY}, 1")
    e(f"s_and_b32 s{S_T0}, s{S_RETRY}, 63")
    e(f"s_waitcnt vmcnt({D2-1})")
    e(f"s_cbranch_scc1 L_{name}_h2c")
    exact(e, M(0), 4)
    e(f"s_cbranch_scc1 L_{name}_h2l")
    e(f"L_{name}_h2ok:")
    if prof:
        e(f"s_memtime {sr(S_TS+20,2)}")
        e(f"s_memrealtime {sr(S_M2,2)}")
        e("s_waitcnt lgkmcnt(0)")
        for k in range(11):
            e(f"v_writelane_b32 v{V_S+4}, s{S_TS+2*k}, {k}")
        e(f"v_writelane_b32 v{V_S+4}, s{S_T2}, 11")
        e(f"v_writelane_b32 v{V_S+4}, s{S_RETRY}, 12")
        e(f"v_writelane_b32 v{V_S+4}, s{S_M2}, 13")
        e(f"v_writelane_b32 v{V_S+4}, s{S_TOT}, 14")
        e(f"s_mov_b64 exec, 0xffff")
        e(f"buffer_store_dword v{V_S+4}, v{V_TMP}, {WS}, s{S_PROF} offen")
        e(f"s_mov_b64 exec, -1")
        e(f"s_add_u32 s{S_PROF}, s{S_PROF}, 64")
    e(f"s_branch L_{name}_top")
    e(f"L_{name}_late:")
    if agg:
        e(f"s_waitcnt vmcnt({nyoung})")
        e("s_barrier")
        e(stB)
        stamp(e, prof, 7)
        idle_work(e, (0, 1))
    adv_state(e)
    gap(opt.get("d1l", 0))
    r1()
    e("s_waitcnt lgkmcnt(0)")
    idle_work(e, (2,))
    e(f"s_mov_b32 s{S_RETRY}, 0")
    for k in range(D1l - 1):
        gap(opt.get("g1l", 0))
        r1()
    if agg:
        assert D1l == 1
        gap(opt.get("d2l", 16))
        e(ldE)
        gap(opt.get("g2", 20))
        e(ldE)
        reduce_("l", 2)
        e(ldE)
        idle_work(e, (3,))
        kvcheck("l")
        e(f"s_waitcnt vmcnt(3)")
        e(f"v_maximum3_f32 v{RA}, v{M(0)}, v{M(0)+1}, v{M(0)+2}")
        e(f"v_cmp_u_f32 vcc, v{RA}, v{M(0)+3}")
        e(f"s_cbranch_vccz L_{name}_{'h2ok' if prof else 'top'}")
        e(ldE)
        e(f"s_waitcnt vmcnt(3)")
        e(f"s_branch L_{name}_h2c")
    else:
        reduce_("l", 2 * (D1l - 1))
        gap(opt.get("d2l", 0))
        e(ldE)
        idle_work(e, (3,))
        kvcheck("l")
        e(f"s_branch L_{name}_h2j")
    reduce_retry("e", 2 * (D1e - 1)); reduce_retry("l", 2 * (D1l - 1))
    kvpoll("e"); kvpoll("l")
    e(f"L_{name}_Lr:")
    e(f"s_add_u32 s{S_TOT}, s{S_TOT}, 1")
    e(f"s_cmp_eq_u32 s{S_STEP}, 0")
    e(f"s_cbranch_scc1 L_{name}_Lok")
    e(f"s_add_u32 s{S_RETRY}, s{S_RETRY}, 1")
    exact(e, M(1), 4)
    e(f"s_cbranch_scc0 L_{name}_Lok")
    e("s_waitcnt lgkmcnt(0)")
    e(ldL)
    e("s_waitcnt vmcnt(0)")
    e(f"ds_write_b128 v{V_W2}, {vr(M(1),4)} offset:{MX+1024}")
    e(f"s_branch L_{name}_Lr")
    e(f"L_{name}_exit:")
    e(farpub)
    if opt.get("light"):
        e(f"s_memtime {sr(S_TS+4,2)}")
        e(f"s_memrealtime {sr(S_TS+6,2)}")
        e("s_waitcnt lgkmcnt(0)")
        e(f"s_sub_u32 s{S_TS+4}, s{S_TS+4}, s{S_TS}")
        e(f"s_sub_u32 s{S_TS+5}, s{S_TS+6}, s{S_TS+2}")
        e(f"s_sub_u32 s{S_TS+6}, s{S_TS+2}, s{S_TS+18}")
        e(f"v_mov_b32 v20, s{S_TS+4}")
        e(f"v_mov_b32 v21, s{S_TS+5}")
        e(f"v_mov_b32 v22, s{S_TS+6}")
        e(f"v_mov_b32 v23, s{S_TOT}")
        e(f"v_mov_b32 v24, 0")
        e(f"s_lshl_b32 s{S_T0}, s{S_H}, 4")
        e(f"s_add_u32 s{S_T0}, s{S_T0}, {WS_PROF}")
        e(f"buffer_store_dwordx4 v[20:23], v24, {WS}, s{S_T0} offen")
    e("s_waitcnt vmcnt(0) lgkmcnt(0)")
    e(f"s_branch L_team_done")

def exact(e, reg, n):
    e(f"s_cmp_gt_u32 s{S_RETRY}, 0x100000")
    e(f"s_cbranch_scc1 L_team_fail")
    e(f"s_mov_b64 {sr(S_M2,2)}, 0")
    for k in range(n):
        e(f"v_cmp_eq_u32 vcc, s{S_SENT}, v{reg+k}")
        e(f"s_or_b64 {sr(S_M2,2)}, {sr(S_M2,2)}, vcc")
```

```python
from common import *
from team import *

S_I = 18
S_SEG = 30
S_N = 31
S_XS = 32
S_XD = 33
S_O1, S_O2, S_O3 = 34, 35, 36
S_PREV = 37
S_CM = 76
SRD_X = 84
SRD_Y = 88
SRD_OUT = 92
CTL_CNTO = 512
CTL_CNTA1 = 1024
CTL_CNTA2 = 1152
XROW = 1056
XSLOT = 32 * XROW

def mfma32(d, a, b, c): return f"v_mfma_f32_16x16x32_bf16 {d}, {a}, {b}, {c}"

def spin_guard(e, sleep=2):
    e(f"s_add_u32 s{S_TOT}, s{S_TOT}, 1")
    e(f"s_cmp_gt_u32 s{S_TOT}, 0x200000")
    e(f"s_cbranch_scc1 L_work_fail")
    if sleep: e(f"s_sleep {sleep}")

def wait_word(e, srd, soff, want, vt0, vt1, mask=None, sleep=2):
    l = e.label("ww"); l2 = e.label("wd")
    e(f"v_mov_b32 v{vt0}, 0")
    e(f"{l}:")
    e(f"buffer_load_dword v{vt1}, v{vt0}, {sr(srd,4)}, {soff} offen sc1")
    e("s_waitcnt vmcnt(0)")
    e(f"v_readfirstlane_b32 s{S_T0}, v{vt1}")
    e("s_nop 0")
    if mask: e(f"s_and_b32 s{S_T0}, s{S_T0}, {mask:#x}")
    e(f"s_cmp_ge_u32 s{S_T0}, {want}")
    e(f"s_cbranch_scc1 {l2}")
    spin_guard(e, sleep)
    e(f"s_branch {l}")
    e(f"{l2}:")

def one_lane_off(e, dst, tmp):
    e(f"s_lshl_b32 s{S_T0}, s{S_WAVE}, 10")
    e(f"v_add_u32 v{tmp}, s{S_T0}, v{V_L16}")
    e(f"v_mov_b32 v{dst}, {OOB:#x}")
    e(f"v_cmp_eq_u32 vcc, 0, v{tmp}")
    e("s_nop 1")
    e(f"v_cndmask_b32 v{dst}, v{dst}, 0, vcc")

def x_dma(e):
    out = []
    for r in range(8):
        g = []
        if r == 0: g.append(f"s_mov_b32 m0, s{S_XD}")
        elif r == 4: g.append(f"s_add_u32 m0, m0, {4*XROW - 3*32}")
        else: g.append(f"s_add_u32 m0, m0, 32")
        if r == 4: g.append(f"s_add_u32 s{S_O1}, s{S_O1}, 4096")
        else: g.append("s_nop 0")
        g.append(f"buffer_load_dwordx4 v{V_L16}, {sr(SRD_X,4)}, s{S_O1} offen offset:{(r&3)*1024} lds")
        out.append(g)
    return out

def x_dma_setup(e, seg_expr_add):
    e(f"s_add_u32 s{S_O1}, s{S_SEG}, {seg_expr_add}")
    e(f"s_lshl_b32 s{S_O1}, s{S_O1}, 15")
    e(f"s_lshl_b32 s{S_T0}, s{S_WAVE}, 13")
    e(f"s_add_u32 s{S_O1}, s{S_O1}, s{S_T0}")

def phase1(e):
    WS = sr(SRD_WS, 4); DBG = sr(SRD_DBG, 4)
    e.c("================= WORKER PHASE 1 : Q/K/V of the x rows =================")
    e(f"v_and_b32 v0, 63, v0")
    e(f"v_lshlrev_b32 v{V_L16}, 4, v0")
    e(f"s_mov_b32 s{S_TOT}, 0")
    e(f"s_mov_b32 s{S_SEG}, s{S_I}")
    gen = weight_loader(e, False, 0)
    assert next(gen) == "after_v"
    mk_srd(e, SRD_X, P_BX, 2048 * 1024)
    e(f"s_mul_i32 s{S_XS}, s{S_WAVE}, {8*XROW}")
    for k in range(2):
        e(f"s_add_u32 s{S_XD}, s{S_XS}, {k*XSLOT}")
        x_dma_setup(e, 7 * k)
        for g in x_dma(e):
            for x in g: e(x)
    try: gen.send(16)
    except StopIteration: pass
    wait_word(e, SRD_DBG, DBG_INIT, 32, 20, 21, mask=0xffff)
    e("s_barrier")
    VXA, VFL, VONE = 1, 2, 3
    e(f"v_lshrrev_b32 v20, 4, v{V_L16}")
    e(f"v_lshrrev_b32 v21, 4, v20")
    e(f"v_and_b32 v20, 15, v20")
    e(f"v_mul_u32_u24 v4, {XROW}, v20")
    e(f"v_lshl_add_u32 v4, v21, 4, v4")
    one_lane_off(e, VFL, 22)
    e(f"v_mov_b32 v{VONE}, 1")
    e(f"s_add_u32 s{S_XD}, s{S_XS}, {2*XSLOT}")
    e(f"s_mov_b32 s{S_XS}, 0")
    e(f"s_mov_b32 s{S_PREV}, {OOB:#x}")
    e(f"s_lshl_b32 s{S_FLGO}, s{S_H}, 12")
    e(f"s_add_u32 s{S_FLGO}, s{S_FLGO}, {WS_FLG}")
    XF = lambda b, T: 16 + (b * 2 + T) * 4
    AQ = lambda t, T: 48 + (t * 2 + T) * 4
    AV = lambda t, T: 80 + (t * 2 + T) * 4
    OUT = 96
    e("L_p1_top:")
    e(f"v_add_u32 v{VXA}, s{S_XS}, v4")
    x_dma_setup(e, 14)
    def xr(ks):
        return [f"ds_read_b128 {vr(XF(ks % 3, T),4)}, v{VXA} offset:{T*16*XROW + ks*64}" for T in range(2)]
    for x in xr(0) + xr(1): e(x)
    dm = x_dma(e)
    for ks in range(16):
        j, hh = ks >> 1, ks & 1
        e(f"s_waitcnt lgkmcnt({2 if ks < 15 else 0})")
        ms = []
        for T in range(2):
            for t in range(4):
                ms.append(mfma32(vr(AQ(t, T),4), ar((j*4+t)*8 + 4*hh, 4), vr(XF(ks % 3, T),4), "0" if ks == 0 else vr(AQ(t, T),4)))
            for t in range(2):
                ms.append(mfma32(vr(AV(t, T),4), vr(XF(ks % 3, T),4), vr(V_WV + (j*2+t)*8 + 4*hh, 4), "0" if ks == 0 else vr(AV(t, T),4)))
        nx = xr(ks + 2) if ks + 2 < 16 else []
        for i, m in enumerate(ms):
            e(m)
            if i < 2 and nx: e(nx[i])
            if ks == 6 and i == 3:
                e("s_waitcnt vmcnt(0)")
                e("s_barrier")
                e(f"buffer_store_dword v{VONE}, v{VFL}, {WS}, s{S_PREV} offen sc1")
            if ks >= 7 and i in (4, 9) and dm:
                for x in dm.pop(0): e(x)
    assert not dm
    e(f"s_lshl_b32 s{S_T0}, s{S_SEG}, 5")
    e(f"s_add_u32 s{S_T0}, s{S_T0}, s{S_H}")
    e(f"s_lshl_b32 s{S_O2}, s{S_T0}, 14")
    e(f"s_lshl_b32 s{S_O3}, s{S_T0}, 13")
    e(f"s_add_u32 s{S_O3}, s{S_O3}, {WS_Q}")
    e(f"s_cmp_lt_u32 s{S_WAVE}, 2")
    e(f"s_cselect_b32 s{S_O3}, s{S_O3}, s{S_O2}")
    e(f"s_and_b32 s{S_T0}, s{S_WAVE}, 1")
    e(f"s_lshl_b32 s{S_T0}, s{S_T0}, 11")
    e(f"s_add_u32 s{S_O3}, s{S_O3}, s{S_T0}")
    e(f"s_add_u32 s{S_T1}, s{S_O3}, 4096")
    e(f"s_lshl_b32 s{S_T0}, s{S_WAVE}, 11")
    e(f"s_add_u32 s{S_O2}, s{S_O2}, s{S_T0}")
    e(f"s_add_u32 s{S_O2}, s{S_O2}, 8192")
    k = 0
    for T in range(2):
        for v in range(2):
            o = OUT + 4 * k; k += 1
            for q in range(4):
                r = 2 * v + (q >> 1); t = 2 * (q & 1)
                e(f"v_cvt_pk_bf16_f32 v{o+q}, v{AQ(t,T)+r}, v{AQ(t+1,T)+r}")
            e(f"buffer_store_dwordx4 {vr(o,4)}, v{V_L16}, {WS}, s{S_T1 if T else S_O3} offen offset:{v*1024} sc1")
    for t in range(2):
        o = OUT + 4 * k; k += 1
        for q in range(4):
            e(f"v_cvt_pk_bf16_f32 v{o+q}, v{AV(t,q>>1) + 2*(q&1)}, v{AV(t,q>>1) + 2*(q&1) + 1}")
        e(f"buffer_store_dwordx4 {vr(o,4)}, v{V_L16}, {WS}, s{S_O2} offen offset:{t*1024} sc1")
    e(f"s_lshl_b32 s{S_PREV}, s{S_SEG}, 2")
    e(f"s_add_u32 s{S_PREV}, s{S_PREV}, s{S_FLGO}")
    e(f"s_add_u32 s{S_XS}, s{S_XS}, {XSLOT}")
    e(f"s_cmp_ge_u32 s{S_XS}, {3*XSLOT}")
    e(f"s_cselect_b32 s{S_XS}, 0, s{S_XS}")
    e(f"s_add_u32 s{S_XD}, s{S_XD}, {XSLOT}")
    e(f"s_sub_u32 s{S_T0}, s{S_XD}, {3*XSLOT}")
    e(f"s_cmp_ge_u32 s{S_XD}, {3*XSLOT}")
    e(f"s_cselect_b32 s{S_XD}, s{S_T0}, s{S_XD}")
    e(f"s_add_u32 s{S_SEG}, s{S_SEG}, 7")
    e(f"s_cmp_lt_u32 s{S_SEG}, 64")
    e(f"s_cbranch_scc1 L_p1_top")
    e("s_waitcnt vmcnt(0)")
    e("s_barrier")
    e(f"buffer_store_dword v{VONE}, v{VFL}, {WS}, s{S_PREV} offen sc1")


def xmax(e, a, b):
    e(f"v_mov_b32 v{b}, v{a}")
    e("s_nop 1")
    e(f"v_permlane32_swap_b32 v{b}, v{a}")
    e("s_nop 0")
    e(f"v_max_f32 v{a}, v{a}, v{b}")
    e(f"v_mov_b32 v{b}, v{a}")
    e("s_nop 1")
    e(f"v_permlane16_swap_b32 v{b}, v{a}")
    e("s_nop 0")
    e(f"v_max_f32 v{a}, v{a}, v{b}")

def attention(e):
    WS = sr(SRD_WS, 4)
    e.c("================= ATTENTION WORKER : x rows of segments i, i+3, ... =================")
    VFL, VONE = 2, 3
    VIDX, VMA, VMB, VKW, VKR, VM0, VW1, VL4 = 4, 5, 6, 7, 8, 9, 10, 11
    MI, KI = 0, 8192
    S00, S10, S11 = 16, 20, 24
    TA, TB, TC, TD = 12, 13, 14, 15
    QF = lambda T, ks: 32 + (T * 4 + ks) * 4
    KF = lambda T, ks: 96 + (T * 4 + ks) * 4
    VF = lambda t: 88 + 4 * t
    M = lambda j: 96 + 4 * j
    AK = lambda t: 64 + 4 * t
    AVV = lambda t: 80 + 4 * t
    e(f"v_lshrrev_b32 v20, 4, v{V_L16}")
    e(f"v_lshrrev_b32 v21, 4, v20")
    e(f"v_and_b32 v20, 15, v20")
    e(f"v_bfe_u32 v22, v20, 1, 1")
    e(f"v_lshrrev_b32 v23, 2, v20")
    e(f"v_and_b32 v24, 1, v20")
    e(f"v_mov_b32 v25, 0xaaaa")
    e(f"v_mul_u32_u24 v25, v25, v22")
    e(f"v_add_u32 v{VIDX}, 0x4444, v25")
    e(f"v_lshrrev_b32 v25, 1, v21")
    e(f"v_lshlrev_b32 v25, 8, v25")
    e(f"v_lshl_add_u32 v25, v23, 6, v25")
    e(f"v_and_b32 v26, 1, v21")
    e(f"v_lshl_add_u32 v25, v26, 5, v25")
    e(f"v_lshl_add_u32 v25, v24, 4, v25")
    e(f"v_lshl_add_u32 v{VMA}, v22, 2, v25")
    e(f"v_add_u32 v{VMB}, 8, v{VMA}")
    e(f"v_lshl_add_u32 v23, v23, 1, v24")
    e(f"v_mul_u32_u24 v25, 272, v23")
    e(f"v_lshl_add_u32 v25, v21, 5, v25")
    e(f"v_add_u32 v{VKR}, {KI}, v25")
    e(f"v_mul_u32_u24 v25, 544, v21")
    e(f"v_lshl_add_u32 v25, v20, 3, v25")
    e(f"s_and_b32 s{S_T0}, s{S_WAVE}, 1")
    e(f"s_lshl_b32 s{S_T0}, s{S_T0}, 7")
    e(f"s_add_u32 s{S_T0}, s{S_T0}, {KI}")
    e(f"v_add_u32 v{VKW}, s{S_T0}, v25")
    e(f"v_lshlrev_b32 v25, 10, v23")
    e(f"v_lshl_add_u32 v25, v21, 6, v25")
    e(f"v_lshl_add_u32 v25, v22, 5, v25")
    e(f"s_lshl_b32 s{S_T0}, s{S_WAVE}, 8")
    e(f"v_add_u32 v{VM0}, s{S_T0}, v25")
    e(f"s_lshl_b32 s{S_T0}, s{S_WAVE}, 10")
    e(f"v_add_u32 v{VW1}, s{S_T0}, v{V_L16}")
    e(f"v_lshrrev_b32 v{VL4}, 2, v{V_L16}")
    e(f"v_lshlrev_b32 v25, 2, v21")
    for r in range(4):
        e(f"v_add_u32 v26, {r}, v25")
        e(f"v_cmp_le_u32 {sr(S_CM+2*r,2)}, v26, v20")
    mk_srd(e, SRD_Y, P_MEM0, 8192)
    e(f"s_mov_b32 s{S_C}, 0x3e0293ee")
    e(f"s_mov_b32 s{S_SENT}, {SENT:#x}")
    e(f"s_mov_b64 {sr(S_MASK,2)}, 0")
    e(f"s_mov_b32 s{S_SEG}, s{S_I}")
    e("L_at_top:")
    e(f"s_bitcmp1_b64 {sr(S_MASK,2)}, s{S_SEG}")
    e(f"s_cbranch_scc1 L_at_have")
    e(f"buffer_load_dword v{TA}, v{VL4}, {WS}, s{S_FLGO} offen sc1")
    e("s_waitcnt vmcnt(0)")
    e(f"v_cmp_ne_u32 {sr(S_MASK,2)}, 0, v{TA}")
    spin_guard(e)
    e("s_branch L_at_top")
    e("L_at_have:")
    e(f"s_lshl_b32 s{S_T0}, s{S_SEG}, 5")
    e(f"s_add_u32 s{S_T0}, s{S_T0}, s{S_H}")
    e(f"s_lshl_b32 s{S_O1}, s{S_T0}, 14")
    e(f"s_lshl_b32 s{S_O2}, s{S_T0}, 13")
    e(f"s_add_u32 s{S_O2}, s{S_O2}, {WS_Q}")
    for T in range(2):
        for ks in range(4):
            e(f"buffer_load_dwordx4 {vr(KF(T,ks),4)}, v{V_L16}, {WS}, s{S_O1} offen offset:{ks*1024} sc1")
            e(f"buffer_load_dwordx4 {vr(QF(T,ks),4)}, v{V_L16}, {WS}, s{S_O2} offen offset:{ks*1024} sc1")
        e(f"s_add_u32 s{S_O1}, s{S_O1}, 4096")
        e(f"s_add_u32 s{S_O2}, s{S_O2}, 4096")
    e(f"s_lshl_b32 s{S_T0}, s{S_WAVE}, 11")
    e(f"s_add_u32 s{S_O1}, s{S_O1}, s{S_T0}")
    for t in range(2):
        e(f"buffer_load_dwordx4 {vr(VF(t),4)}, v{V_L16}, {WS}, s{S_O1} offen offset:{t*1024} sc1")
    for k in range(0, 24, 2): e(f"v_mov_b64 {vr(64+k,2)}, 0")
    e(f"s_lshl_b32 s{S_O3}, s{S_SEG}, 13")
    e(f"s_add_u32 s{S_O3}, s{S_O3}, {WS_HIST}")
    e(f"s_add_u32 s{S_O2}, s{S_O3}, 4096")
    e("s_waitcnt vmcnt(2)")
    for ks in range(4):
        c = lambda r: "0" if ks == 0 else vr(r, 4)
        e(mfma32(vr(S00,4), vr(KF(0,ks),4), vr(QF(0,ks),4), c(S00)))
        e(mfma32(vr(S10,4), vr(KF(0,ks),4), vr(QF(1,ks),4), c(S10)))
        e(mfma32(vr(S11,4), vr(KF(1,ks),4), vr(QF(1,ks),4), c(S11)))
    e(f"v_mov_b32 v{TA}, 0xd028965f")
    e("s_nop 7")
    for r in range(4):
        e(f"v_cndmask_b32 v{S00+r}, v{TA}, v{S00+r}, {sr(S_CM+2*r,2)}")
        e(f"v_cndmask_b32 v{S11+r}, v{TA}, v{S11+r}, {sr(S_CM+2*r,2)}")
    e(f"v_max3_f32 v{TC}, v{S00}, v{S00+1}, v{S00+2}")
    e(f"v_max_f32 v{TC}, v{TC}, v{S00+3}")
    e(f"v_max3_f32 v{TD}, v{S10}, v{S10+1}, v{S10+2}")
    e(f"v_max3_f32 v{TD}, v{TD}, v{S10+3}, v{S11}")
    e(f"v_max3_f32 v{TD}, v{TD}, v{S11+1}, v{S11+2}")
    e(f"v_max_f32 v{TD}, v{TD}, v{S11+3}")
    e(f"s_cmp_lg_u32 s{S_SEG}, 0")
    e(f"s_cbranch_scc1 L_at_poll")
    for b in range(2):
        for k in range(2):
            e(f"buffer_load_dwordx2 {vr(M(b) + 2*k, 2)}, v{VM0}, {sr(SRD_Y,4)}, 0 offen offset:{8*b + 16*k}")
    e("s_waitcnt vmcnt(0)")
    e("s_branch L_at_mem")
    e("L_at_again:")
    spin_guard(e, 1)
    e("L_at_poll:")
    e(f"buffer_load_dwordx4 {vr(M(0),4)}, v{VW1}, {WS}, s{S_O3} offen sc1")
    e(f"buffer_load_dwordx4 {vr(M(1),4)}, v{VW1}, {WS}, s{S_O2} offen sc1")
    e(f"s_mov_b64 {sr(S_M2,2)}, 0")
    e("s_waitcnt vmcnt(0)")
    for k in range(8):
        e(f"v_cmp_eq_u32 vcc, s{S_SENT}, v{M(0)+k}")
        e(f"s_or_b64 {sr(S_M2,2)}, {sr(S_M2,2)}, vcc")
    e(f"s_cbranch_scc1 L_at_again")
    e("L_at_mem:")
    e(f"ds_write_b128 v{VW1}, {vr(M(0),4)} offset:{MI}")
    e(f"ds_write_b128 v{VW1}, {vr(M(1),4)} offset:{MI+4096}")
    e("s_waitcnt lgkmcnt(0)")
    e("s_barrier")
    for kc in range(8):
        e(f"ds_read2st64_b32 {vr(M(kc),2)}, v{VMA} offset0:{2*kc} offset1:{2*kc+16}")
        e(f"ds_read2st64_b32 {vr(M(kc)+2,2)}, v{VMB} offset0:{2*kc} offset1:{2*kc+16}")
        if kc == 5: e("s_waitcnt lgkmcnt(8)")
    e(f"s_cmp_lt_u32 s{S_WAVE}, 2")
    e("s_waitcnt lgkmcnt(0)")
    e(f"s_cbranch_scc1 L_at_v")
    for j in range(8):
        for t in range(4):
            e(f"v_smfmac_f32_16x16x64_bf16 {vr(AK(t),4)}, {vr(M(j),4)}, {ar((j*4+t)*8,8)}, v{VIDX}")
    e("s_nop 7")
    for t in range(4):
        e(f"v_pk_add_f32 {vr(AK(t),2)}, {vr(AK(t),2)}, {vr(AK(t)+2,2)}")
    e(f"v_cvt_pk_bf16_f32 v28, v{AK(0)}, v{AK(1)}")
    e(f"v_cvt_pk_bf16_f32 v29, v{AK(2)}, v{AK(3)}")
    e(f"v_cvt_pk_bf16_f32 v30, v{AK(0)+1}, v{AK(1)+1}")
    e(f"v_cvt_pk_bf16_f32 v31, v{AK(2)+1}, v{AK(3)+1}")
    e(f"ds_write_b64 v{VKW}, v[28:29]")
    e(f"ds_write_b64 v{VKW}, v[30:31] offset:272")
    e("L_at_v:")
    vsm = [f"v_smfmac_f32_16x16x64_bf16 {vr(AVV(t),4)}, {vr(M(j),4)}, {vr(V_WV + (j*2+t)*8,8)}, v{VIDX}" for j in range(8) for t in range(2)]
    for x in vsm[:5]: e(x)
    e("s_waitcnt lgkmcnt(0)")
    e("s_barrier")
    for ks in range(4):
        e(f"ds_read_b128 {vr(AK(ks),4)}, v{VKR} offset:{128*(ks>>1) + 16*(ks&1)}")
    for x in vsm[5:]: e(x)
    SM0, SM1 = 96, 100
    e("s_waitcnt lgkmcnt(0)")
    for ks in range(4):
        c = lambda r: "0" if ks == 0 else vr(r, 4)
        e(mfma32(vr(SM0,4), vr(AK(ks),4), vr(QF(0,ks),4), c(SM0)))
        e(mfma32(vr(SM1,4), vr(AK(ks),4), vr(QF(1,ks),4), c(SM1)))
    VM = 104
    ONES = 108
    for t in range(2):
        e(f"v_add_f32 v{AVV(t)}, v{AVV(t)}, v{AVV(t)+2}")
        e(f"v_add_f32 v{AVV(t)+1}, v{AVV(t)+1}, v{AVV(t)+3}")
        e(f"v_cvt_pk_bf16_f32 v{VM+2*t}, v{AVV(t)}, v{AVV(t)+1}")
        e(f"v_mov_b32 v{VM+2*t+1}, 0")
    for k in range(4): e(f"v_mov_b32 v{ONES+k}, 0x3f803f80")
    e(f"v_max3_f32 v{TC}, v{TC}, v{SM0}, v{SM0+1}")
    e(f"v_max3_f32 v{TD}, v{TD}, v{SM1}, v{SM1+1}")
    xmax(e, TC, TA); xmax(e, TD, TA)
    e(f"v_mul_f32 v{TC}, s{S_C}, v{TC}")
    e(f"v_mul_f32 v{TD}, s{S_C}, v{TD}")
    l0 = [SM0, SM0 + 1] + [S00 + r for r in range(4)]
    l1 = [SM1, SM1 + 1] + [S10 + r for r in range(4)] + [S11 + r for r in range(4)]
    for r in l0: e(f"v_fma_f32 v{r}, v{r}, s{S_C}, -v{TC}")
    for r in l1: e(f"v_fma_f32 v{r}, v{r}, s{S_C}, -v{TD}")
    for r in l0 + l1: e(f"v_exp_f32 v{r}, v{r}")
    PM0, PM1, P0, P1 = 112, 114, 116, 120
    e(f"v_cvt_pk_bf16_f32 v{PM0}, v{SM0}, v{SM0+1}")
    e(f"v_mov_b32 v{PM0+1}, 0")
    e(f"v_cvt_pk_bf16_f32 v{PM1}, v{SM1}, v{SM1+1}")
    e(f"v_mov_b32 v{PM1+1}, 0")
    e(f"v_cvt_pk_bf16_f32 v{P0}, v{S00}, v{S00+1}")
    e(f"v_cvt_pk_bf16_f32 v{P0+1}, v{S00+2}, v{S00+3}")
    e(f"v_cvt_pk_bf16_f32 v{P1}, v{S10}, v{S10+1}")
    e(f"v_cvt_pk_bf16_f32 v{P1+1}, v{S10+2}, v{S10+3}")
    e(f"v_cvt_pk_bf16_f32 v{P1+2}, v{S11}, v{S11+1}")
    e(f"v_cvt_pk_bf16_f32 v{P1+3}, v{S11+2}, v{S11+3}")
    L0, L1 = 32, 36
    O = lambda T, t: 40 + (T * 2 + t) * 4
    m16 = lambda d, a, b, c: f"v_mfma_f32_16x16x16_bf16 {vr(d,4)}, {vr(a,2)}, {vr(b,2)}, {c}"
    e("s_nop 1")
    e(m16(L0, ONES, PM0, "0")); e(m16(L1, ONES, PM1, "0"))
    for t in range(2):
        e(m16(O(0,t), VM + 2*t, PM0, "0")); e(m16(O(1,t), VM + 2*t, PM1, "0"))
    e(m16(L0, ONES, P0, vr(L0,4)))
    e(mfma32(vr(L1,4), vr(ONES,4), vr(P1,4), vr(L1,4)))
    for t in range(2):
        e(m16(O(0,t), VF(t), P0, vr(O(0,t),4)))
        e(mfma32(vr(O(1,t),4), vr(VF(t),4), vr(P1,4), vr(O(1,t),4)))
    e(f"v_rcp_f32 v{L0}, v{L0}")
    e(f"v_rcp_f32 v{L1}, v{L1}")
    e(f"s_lshl_b32 s{S_O1}, s{S_SEG}, 18")
    e(f"s_lshl_b32 s{S_T0}, s{S_H}, 12")
    e(f"s_add_u32 s{S_O1}, s{S_O1}, s{S_T0}")
    e(f"s_add_u32 s{S_O1}, s{S_O1}, {WS_O}")
    e(f"s_add_u32 s{S_O2}, s{S_O1}, {1 << 17}")
    e("s_nop 3")
    for T in range(2):
        for t in range(2):
            for r in range(4):
                e(f"v_mul_f32 v{O(T,t)+r}, v{O(T,t)+r}, v{L1 if T else L0}")
        for t in range(2):
            e(f"v_cvt_pk_bf16_f32 v{56 + 4*T + 2*t}, v{O(T,t)}, v{O(T,t)+1}")
            e(f"v_cvt_pk_bf16_f32 v{56 + 4*T + 2*t + 1}, v{O(T,t)+2}, v{O(T,t)+3}")
        e(f"buffer_store_dwordx4 {vr(56 + 4*T,4)}, v{VW1}, {WS}, s{S_O2 if T else S_O1} offen sc1")
    e(f"s_and_b32 s{S_T0}, s{S_SEG}, 31")
    e(f"s_lshl_b32 s{S_T0}, s{S_T0}, 12")
    e(f"s_lshr_b32 s{S_T1}, s{S_SEG}, 5")
    e(f"s_lshl_b32 s{S_T1}, s{S_T1}, 7")
    e(f"s_add_u32 s{S_T0}, s{S_T0}, s{S_T1}")
    e(f"s_add_u32 s{S_T0}, s{S_T0}, {WS_FLG + CTL_CNTO}")
    e("s_waitcnt vmcnt(0)")
    e("s_barrier")
    e(f"buffer_atomic_add v{VONE}, v{VFL}, {WS}, s{S_T0} offen")
    e(f"s_add_u32 s{S_SEG}, s{S_SEG}, 3")
    e(f"s_cmp_lt_u32 s{S_SEG}, 64")
    e(f"s_cbranch_scc1 L_at_top")
    e("s_waitcnt vmcnt(0)")
    e("s_endpgm")


S_CG, S_RB = 30, 31

def partA(e):
    WS = sr(SRD_WS, 4)
    e.c("================= PART A =================")
    VFL, VONE = 2, 3
    VD0, VD1, VD2, VD3 = 4, 5, 6, 7
    VT = 8
    VXO, VW1, VOO = 12, 13, 14
    X = lambda T, ks: 128 + (T * 16 + ks) * 4
    ACC = lambda t, T: 16 + (t * 2 + T) * 4
    WB = lambda b, t: 48 + (b * 4 + t) * 4
    PK, VB, PQ = 80, 96, 112
    B0, B1, XL = 0, 65536, 131072
    e(f"v_lshrrev_b32 v20, 4, v{V_L16}")
    e(f"v_lshrrev_b32 v21, 4, v20")
    e(f"v_and_b32 v22, 15, v20")
    e(f"v_lshrrev_b32 v23, 3, v20")
    e(f"v_and_b32 v24, 7, v20")
    e(f"v_and_b32 v25, 2, v23")
    e(f"v_xor_b32 v24, v24, v25")
    e(f"v_lshlrev_b32 v24, 4, v24")
    e(f"v_mul_u32_u24 v25, 3072, v23")
    e(f"v_add_u32 v{VD0}, v25, v24")
    e(f"v_xor_b32 v26, 64, v24")
    e(f"v_add_u32 v{VD1}, v25, v26")
    e(f"v_lshrrev_b32 v25, 2, v23")
    e(f"v_lshlrev_b32 v25, 4, v25")
    e(f"v_and_b32 v27, 3, v23")
    e(f"v_add_u32 v25, v25, v27")
    e(f"v_lshlrev_b32 v25, 10, v25")
    e(f"v_add_u32 v{VD2}, v25, v24")
    e(f"v_add_u32 v{VD3}, v25, v26")
    e(f"v_lshrrev_b32 v23, 2, v22")
    e(f"v_lshl_add_u32 v23, v21, 3, v23")
    e(f"v_lshlrev_b32 v23, 7, v23")
    e(f"v_and_b32 v24, 3, v22")
    e(f"v_lshl_add_u32 v23, v24, 3, v23")
    e(f"v_lshrrev_b32 v24, 3, v22")
    e(f"v_and_b32 v25, 1, v21")
    e(f"v_lshl_add_u32 v24, v25, 1, v24")
    for t in range(4):
        e(f"v_xor_b32 v25, {t}, v24")
        e(f"v_lshl_add_u32 v{VT+t}, v25, 5, v23")
    e(f"v_lshlrev_b32 v{VXO}, 10, v22")
    e(f"v_lshl_add_u32 v{VXO}, v21, 4, v{VXO}")
    e(f"s_lshl_b32 s{S_T0}, s{S_WAVE}, 10")
    e(f"v_add_u32 v{VW1}, s{S_T0}, v{V_L16}")
    e(f"v_lshlrev_b32 v{VOO}, 11, v22")
    e(f"v_lshl_add_u32 v{VOO}, v21, 3, v{VOO}")
    mk_srd(e, SRD_X, P_AX, 2048 * 1024)
    mk_srd(e, SRD_Y, P_AWQKV, 512 * 3072)
    mk_srd(e, SRD_T, P_AWO, 512 * 1024)
    mk_srd(e, SRD_OUT, P_OUT, 2048 * 2048)
    def stage(buf, mat):
        e(f"s_lshl_b32 s{S_T0}, s{S_WAVE}, 14")
        e(f"s_add_u32 m0, s{S_T0}, {buf}")
        e(f"s_lshl_b32 s{S_T1}, s{S_CG}, 7")
        if mat < 3:
            e(f"s_mul_i32 s{S_O1}, s{S_WAVE}, {128*3072}")
            e(f"s_add_u32 s{S_O1}, s{S_O1}, {mat*1024}")
        else:
            e(f"s_lshl_b32 s{S_O1}, s{S_WAVE}, 17")
        e(f"s_add_u32 s{S_O1}, s{S_O1}, s{S_T1}")
        for d in range(16):
            if mat < 3:
                e(f"buffer_load_dwordx4 v{VD1 if d & 1 else VD0}, {sr(SRD_Y,4)}, s{S_O1} offen lds")
                e(f"s_add_u32 s{S_O1}, s{S_O1}, {8*3072}")
            else:
                e(f"buffer_load_dwordx4 v{VD3 if d & 1 else VD2}, {sr(SRD_T,4)}, s{S_O1} offen lds")
                e(f"s_add_u32 s{S_O1}, s{S_O1}, {(4 if (d & 3) < 3 else 20)*1024}")
            e(f"s_add_u32 m0, m0, 1024")
            e("s_nop 0")
    def gpass(buf, w_is_a):
        if buf:
            for t in range(4): e(f"v_add_u32 v{VT+t}, {buf}, v{VT+t}")
        def rd(ks):
            return [f"ds_read_b64_tr_b16 {vr(WB(ks&1,t) + 2*hh, 2)}, v{VT+t} offset:{ks*4096 + hh*512}" for t in range(4) for hh in range(2)]
        for x in rd(0): e(x)
        for ks in range(16):
            nx = rd(ks + 1) if ks < 15 else []
            e("s_waitcnt lgkmcnt(0)")
            i = 0
            for t in range(4):
                for T in range(2):
                    c = "0" if ks == 0 else vr(ACC(t, T), 4)
                    if w_is_a: e(mfma32(vr(ACC(t,T),4), vr(WB(ks&1,t),4), vr(X(T,ks),4), c))
                    else:      e(mfma32(vr(ACC(t,T),4), vr(X(T,ks),4), vr(WB(ks&1,t),4), c))
                    if nx and i < 4:
                        e(nx.pop(0)); e(nx.pop(0))
                    i += 1
        if buf:
            for t in range(4): e(f"v_subrev_u32 v{VT+t}, {buf}, v{VT+t}")
        e("s_nop 7")
    def phi():
        e(f"s_mov_b32 s{S_T0}, 0x3fb8aa3b")
        e(f"s_mov_b32 s{S_T1}, 0x358637bd")
        for b in range(0, 32, 8):
            for k in range(8): e(f"v_mul_f32 v{48+k}, s{S_T0}, v{16+b+k}")
            for k in range(8): e(f"v_min_f32 v{48+k}, 0, v{48+k}")
            for k in range(8): e(f"v_exp_f32 v{48+k}, v{48+k}")
            for k in range(8): e(f"v_max_f32 v{16+b+k}, 0, v{16+b+k}")
            for k in range(8): e(f"v_add_f32 v{16+b+k}, v{16+b+k}, v{48+k}")
            for k in range(8): e(f"v_add_f32 v{16+b+k}, s{S_T1}, v{16+b+k}")
    def pack(dst):
        for t in range(4):
            for q in range(4):
                e(f"v_cvt_pk_bf16_f32 v{dst + 4*t + q}, v{ACC(t,q>>1) + 2*(q&1)}, v{ACC(t,q>>1) + 2*(q&1) + 1}")
    stage(B0, 1)
    e(f"s_lshl_b32 s{S_O2}, s{S_RB}, 17")
    e(f"s_lshl_b32 s{S_T0}, s{S_WAVE}, 15")
    e(f"s_add_u32 s{S_O2}, s{S_O2}, s{S_T0}")
    e(f"s_add_u32 s{S_O3}, s{S_O2}, 16384")
    for ks in range(16):
        for T in range(2):
            e(f"buffer_load_dwordx4 {vr(X(T,ks),4)}, v{VXO}, {sr(SRD_X,4)}, s{S_O3 if T else S_O2} offen offset:{ks*64}")
    e("s_waitcnt vmcnt(40)")
    stage(B1, 2)
    e("s_waitcnt vmcnt(16)")
    e("s_barrier")
    gpass(B0, False)
    e("s_waitcnt vmcnt(0)")
    e("s_barrier")
    stage(B0, 0)
    phi(); pack(PK)
    gpass(B1, False)
    pack(VB)
    for k in range(4): e(f"v_mov_b32 v{48+k}, 0x3f803f80")
    e("s_nop 1")
    for t in range(4):
        e(mfma32(vr(16 + 8*t,4), vr(PK + 4*t,4), vr(VB + 4*t,4), "0"))
        e(mfma32(vr(20 + 8*t,4), vr(PK + 4*t,4), vr(48,4), "0"))
    e(f"s_lshl_b32 s{S_T0}, s{S_WAVE}, 11")
    e(f"s_add_u32 s{S_T0}, s{S_T0}, {XL}")
    e(f"v_add_u32 v52, s{S_T0}, v{V_L16}")
    e(f"s_lshl_b32 s{S_T0}, s{S_WAVE}, 13")
    e(f"s_add_u32 s{S_T0}, s{S_T0}, {XL}")
    e(f"v_add_u32 v53, s{S_T0}, v{V_L16}")
    e("s_nop 7")
    for t in range(4):
        for k in range(2):
            e(f"ds_write_b128 v52, {vr(16 + 8*t + 4*k,4)} offset:{t*8192 + k*1024}")
    e("s_waitcnt vmcnt(0) lgkmcnt(0)")
    e("s_barrier")
    stage(B1, 3)
    for k in range(8):
        e(f"ds_read_b128 {vr(16 + 4*k,4)}, v53 offset:{k*1024}")
    e("s_waitcnt lgkmcnt(0)")
    for w in range(1, 4):
        for k in range(8): e(f"v_add_f32 v{16+k}, v{16+k}, v{16 + 8*w + k}")
    e(f"s_lshl_b32 s{S_O2}, s{S_CG}, 17")
    e(f"s_lshl_b32 s{S_T0}, s{S_WAVE}, 11")
    e(f"s_add_u32 s{S_O2}, s{S_O2}, s{S_T0}")
    e(f"s_add_u32 s{S_O2}, s{S_O2}, {WS_PA}")
    e(f"s_lshl_b32 s{S_T0}, s{S_RB}, 13")
    e(f"s_add_u32 s{S_T0}, s{S_T0}, s{S_O2}")
    e(f"buffer_store_dwordx4 v[16:19], v{V_L16}, {WS}, s{S_T0} offen sc1")
    e(f"buffer_store_dwordx4 v[20:23], v{V_L16}, {WS}, s{S_T0} offen offset:1024 sc1")
    e(f"s_lshl_b32 s{S_O3}, s{S_CG}, 12")
    e(f"s_add_u32 s{S_O3}, s{S_O3}, {WS_FLG + CTL_CNTA1}")
    e("s_waitcnt vmcnt(0)")
    e("s_barrier")
    e(f"buffer_atomic_add v{VONE}, v{VFL}, {WS}, s{S_O3} offen")
    gpass(B0, True)
    phi(); pack(PQ)
    wait_word(e, SRD_WS, f"s{S_O3}", 16, 20, 21)
    for rb in range(16):
        e(f"buffer_load_dwordx4 {vr(128 + 8*rb,4)}, v{V_L16}, {WS}, s{S_O2} offen sc1")
        e(f"buffer_load_dwordx4 {vr(132 + 8*rb,4)}, v{V_L16}, {WS}, s{S_O2} offen offset:1024 sc1")
        e(f"s_add_u32 s{S_O2}, s{S_O2}, 8192")
    e("s_waitcnt vmcnt(0)")
    for st in (64, 32, 16, 8):
        for k in range(st): e(f"v_add_f32 v{128+k}, v{128+k}, v{128+st+k}")
    for q in range(4): e(f"v_cvt_pk_bf16_f32 v{16+q}, v{128+2*q}, v{129+2*q}")
    e(f"v_add_u32 v52, {XL}, v{VW1}")
    e(f"v_add_u32 v53, {XL}, v{V_L16}")
    e(f"ds_write_b128 v52, v[16:19]")
    e("s_waitcnt lgkmcnt(0)")
    e("s_barrier")
    KZ = 80
    for t in range(4): e(f"ds_read_b128 {vr(KZ + 4*t,4)}, v53 offset:{t*1024}")
    e("s_waitcnt lgkmcnt(0)")
    m16 = lambda d, a, b: f"v_mfma_f32_16x16x16_bf16 {vr(d,4)}, {vr(a,2)}, {vr(b,2)}, 0"
    for t in range(4):
        for T in range(2):
            e(m16(ACC(t,T), KZ + 4*t, PQ + 4*t + 2*T))
            e(m16(48 + (t*2+T)*4, KZ + 4*t + 2, PQ + 4*t + 2*T))
    e(f"s_mov_b32 s{S_T1}, 0x358637bd")
    e("s_nop 7")
    for k in range(8): e(f"v_add_f32 v{48+4*k}, s{S_T1}, v{48+4*k}")
    for k in range(8): e(f"v_rcp_f32 v{48+4*k}, v{48+4*k}")
    e("s_nop 0")
    for k in range(8):
        for r in range(4): e(f"v_mul_f32 v{16+4*k+r}, v{16+4*k+r}, v{48+4*k}")
    e(f"s_lshl_b32 s{S_O2}, s{S_RB}, 17")
    e(f"s_lshl_b32 s{S_T0}, s{S_WAVE}, 15")
    e(f"s_add_u32 s{S_O2}, s{S_O2}, s{S_T0}")
    e(f"s_add_u32 s{S_O2}, s{S_O2}, {WS_OA}")
    e(f"s_lshl_b32 s{S_T0}, s{S_CG}, 11")
    e(f"s_add_u32 s{S_T0}, s{S_T0}, s{S_O2}")
    e(f"s_add_u32 s{S_T1}, s{S_T0}, 16384")
    for T in range(2):
        for p in range(2):
            o = 96 + (T * 2 + p) * 4
            for q in range(4):
                a = ACC(2*p + (q >> 1), T) + 2 * (q & 1)
                e(f"v_cvt_pk_bf16_f32 v{o+q}, v{a}, v{a+1}")
            e(f"buffer_store_dwordx4 {vr(o,4)}, v{V_L16}, {WS}, s{S_T1 if T else S_T0} offen offset:{p*1024} sc1")
    e(f"s_lshl_b32 s{S_O3}, s{S_RB}, 12")
    e(f"s_add_u32 s{S_O3}, s{S_O3}, {WS_FLG + CTL_CNTA2}")
    e("s_waitcnt vmcnt(0)")
    e("s_barrier")
    e(f"buffer_atomic_add v{VONE}, v{VFL}, {WS}, s{S_O3} offen")
    wait_word(e, SRD_WS, f"s{S_O3}", 8, 20, 21)
    for k in range(32):
        e(f"buffer_load_dwordx4 {vr(128 + 4*k,4)}, v{V_L16}, {WS}, s{S_O2} offen offset:{(k&3)*1024} sc1")
        if k & 3 == 3: e(f"s_add_u32 s{S_O2}, s{S_O2}, 4096")
    e("s_waitcnt vmcnt(0)")
    gpass(B1, True)
    e(f"s_lshl_b32 s{S_O2}, s{S_RB}, 18")
    e(f"s_lshl_b32 s{S_T0}, s{S_WAVE}, 16")
    e(f"s_add_u32 s{S_O2}, s{S_O2}, s{S_T0}")
    e(f"s_lshl_b32 s{S_T0}, s{S_CG}, 7")
    e(f"s_add_u32 s{S_O2}, s{S_O2}, s{S_T0}")
    e(f"s_add_u32 s{S_O3}, s{S_O2}, 32768")
    for t in range(4):
        for T in range(2):
            o = 96 + (t * 2 + T) * 2
            e(f"v_cvt_pk_bf16_f32 v{o}, v{ACC(t,T)}, v{ACC(t,T)+1}")
            e(f"v_cvt_pk_bf16_f32 v{o+1}, v{ACC(t,T)+2}, v{ACC(t,T)+3}")
            e(f"buffer_store_dwordx2 {vr(o,2)}, v{VOO}, {sr(SRD_OUT,4)}, s{S_O3 if T else S_O2} offen offset:{t*32}")
    e("s_barrier")


def outgemm(e):
    WS = sr(SRD_WS, 4)
    e.c("================= OUTPUT GEMM OF PART B =================")
    VD, VT0, VT1, VRW, VRR, VOO = 4, 5, 6, 7, 8, 14
    S_U = 32
    e(f"v_lshrrev_b32 v20, 4, v{V_L16}")
    e(f"v_lshrrev_b32 v21, 4, v20")
    e(f"v_and_b32 v22, 15, v20")
    e(f"v_lshrrev_b32 v23, 2, v20")
    e(f"v_lshrrev_b32 v24, 3, v23")
    e(f"v_and_b32 v25, 3, v20")
    e(f"v_lshlrev_b32 v26, 1, v24")
    e(f"v_xor_b32 v25, v25, v26")
    e(f"v_lshlrev_b32 v24, 5, v24")
    e(f"v_and_b32 v26, 3, v23")
    e(f"v_lshl_add_u32 v24, v26, 3, v24")
    e(f"v_bfe_u32 v26, v23, 2, 1")
    e(f"v_add_u32 v24, v24, v26")
    e(f"v_lshlrev_b32 v24, 10, v24")
    e(f"v_lshl_add_u32 v{VD}, v25, 4, v24")
    e(f"s_lshl_b32 s{S_T0}, s{S_RB}, 6")
    e(f"v_add_u32 v{VD}, s{S_T0}, v{VD}")
    e(f"v_lshrrev_b32 v23, 2, v22")
    e(f"v_lshl_add_u32 v23, v21, 3, v23")
    e(f"v_lshlrev_b32 v23, 6, v23")
    e(f"v_and_b32 v24, 3, v22")
    e(f"v_lshl_add_u32 v23, v24, 3, v23")
    e(f"s_lshl_b32 s{S_T0}, s{S_WAVE}, 15")
    e(f"v_add_u32 v23, s{S_T0}, v23")
    e(f"v_and_b32 v24, 1, v21")
    e(f"v_lshl_add_u32 v{VT0}, v24, 5, v23")
    e(f"v_xor_b32 v24, 1, v24")
    e(f"v_lshl_add_u32 v{VT1}, v24, 5, v23")
    mk_srd(e, SRD_T, P_WO, 0x400000)
    for rnd in range(2):
        e(f"s_lshl_b32 m0, s{S_WAVE}, 15")
        e(f"s_lshl_b32 s{S_O1}, s{S_WAVE}, 20")
        for d in range(32):
            kst = rnd * 16 + (d >> 1)
            row = (kst >> 2) * 128 + 64 * (d & 1) + 2 * (kst & 3)
            e(f"s_add_u32 s{S_T0}, s{S_O1}, {row*1024}")
            e(f"buffer_load_dwordx4 v{VD}, {sr(SRD_T,4)}, s{S_T0} offen lds")
            e(f"s_add_u32 m0, m0, 1024")
        e("s_waitcnt vmcnt(0)")
        for k in range(16):
            for tau in range(2):
                for hh in range(2):
                    e(f"ds_read_b64_tr_b16 {ar(((rnd*16+k)*2+tau)*4 + 2*hh, 2)}, v{VT1 if tau else VT0} offset:{k*2048 + hh*256}")
            if k & 1: e("s_waitcnt lgkmcnt(4)")
        e("s_waitcnt lgkmcnt(0)")
    RX = 131072
    e(f"s_lshl_b32 s{S_T0}, s{S_WAVE}, 11")
    e(f"s_add_u32 s{S_T0}, s{S_T0}, {RX}")
    e(f"v_add_u32 v{VRW}, s{S_T0}, v{V_L16}")
    e(f"s_and_b32 s{S_T0}, s{S_WAVE}, 1")
    e(f"s_lshl_b32 s{S_T0}, s{S_T0}, 10")
    e(f"s_add_u32 s{S_T0}, s{S_T0}, {RX}")
    e(f"v_add_u32 v{VRR}, s{S_T0}, v{V_L16}")
    e(f"s_mov_b32 s{S_U}, s{S_CG}")
    e("L_og_top:")
    e(f"s_lshr_b32 s{S_T2}, s{S_U}, 1")
    e(f"s_and_b32 s{S_O1}, s{S_T2}, 31")
    e(f"s_lshl_b32 s{S_O1}, s{S_O1}, 12")
    e(f"s_lshr_b32 s{S_T1}, s{S_T2}, 5")
    e(f"s_lshl_b32 s{S_T1}, s{S_T1}, 7")
    e(f"s_add_u32 s{S_O1}, s{S_O1}, s{S_T1}")
    e(f"s_add_u32 s{S_O1}, s{S_O1}, {WS_FLG + CTL_CNTO}")
    e(f"s_lshl_b32 s{S_O2}, s{S_U}, 17")
    e(f"s_lshl_b32 s{S_T1}, s{S_WAVE}, 15")
    e(f"s_add_u32 s{S_O2}, s{S_O2}, s{S_T1}")
    e(f"s_add_u32 s{S_O2}, s{S_O2}, {WS_O}")
    wait_word(e, SRD_WS, f"s{S_O1}", 32, 20, 21, sleep=2)
    for k in range(32):
        e(f"buffer_load_dwordx4 {vr(128 + 4*k,4)}, v{V_L16}, {WS}, s{S_O2} offen offset:{(k&3)*1024} sc1")
        if k & 3 == 3: e(f"s_add_u32 s{S_O2}, s{S_O2}, 4096")
    for k in range(32):
        e(f"s_waitcnt vmcnt({31-k})")
        for tau in range(2):
            e(mfma32(vr(16 + 4*tau,4), ar((k*2+tau)*4, 4), vr(128 + 4*k,4), "0" if k == 0 else vr(16 + 4*tau,4)))
    e(f"s_lshl_b32 s{S_O3}, s{S_U}, 15")
    e(f"s_lshl_b32 s{S_T0}, s{S_RB}, 6")
    e(f"s_add_u32 s{S_O3}, s{S_O3}, s{S_T0}")
    e(f"s_lshl_b32 s{S_T0}, s{S_WAVE}, 5")
    e(f"s_add_u32 s{S_O3}, s{S_O3}, s{S_T0}")
    e(f"s_add_u32 s{S_O3}, s{S_O3}, 1024")
    e("s_nop 3")
    e(f"ds_write_b128 v{VRW}, v[16:19]")
    e(f"ds_write_b128 v{VRW}, v[20:23] offset:1024")
    e("s_waitcnt lgkmcnt(0)")
    e("s_barrier")
    e(f"s_cmp_ge_u32 s{S_WAVE}, 2")
    e(f"s_cbranch_scc1 L_og_next")
    for w in range(4): e(f"ds_read_b128 {vr(24 + 4*w,4)}, v{VRR} offset:{w*2048}")
    e("s_waitcnt lgkmcnt(0)")
    for r in range(4):
        e(f"v_add_f32 v{24+r}, v{24+r}, v{28+r}")
        e(f"v_add_f32 v{32+r}, v{32+r}, v{36+r}")
    for r in range(4): e(f"v_add_f32 v{24+r}, v{24+r}, v{32+r}")
    e(f"v_cvt_pk_bf16_f32 v24, v24, v25")
    e(f"v_cvt_pk_bf16_f32 v25, v26, v27")
    e(f"buffer_store_dwordx2 v[24:25], v{VOO}, {sr(SRD_OUT,4)}, s{S_O3} offen")
    e("L_og_next:")
    e(f"v_xor_b32 v{VRW}, 8192, v{VRW}")
    e(f"v_xor_b32 v{VRR}, 8192, v{VRR}")
    e(f"s_add_u32 s{S_U}, s{S_U}, 8")
    e(f"s_cmp_lt_u32 s{S_U}, 128")
    e(f"s_cbranch_scc1 L_og_top")
    e("s_waitcnt vmcnt(0)")
    e("s_endpgm")


def worker_code(e):
    e(f"s_mul_i32 s{S_H}, s{S_T2}, 9363")
    e(f"s_lshr_b32 s{S_H}, s{S_H}, 16")
    e(f"s_mul_i32 s{S_T0}, s{S_H}, 7")
    e(f"s_sub_u32 s{S_I}, s{S_T2}, s{S_T0}")
    phase1(e)
    e(f"s_cmp_ge_u32 s{S_I}, 3")
    e(f"s_cbranch_scc1 L_partA")
    attention(e)
    e("L_partA:")
    e(f"s_lshl_b32 s{S_T0}, s{S_H}, 2")
    e(f"s_add_u32 s{S_T0}, s{S_T0}, s{S_I}")
    e(f"s_sub_u32 s{S_T0}, s{S_T0}, 3")
    e(f"s_lshr_b32 s{S_CG}, s{S_T0}, 4")
    e(f"s_and_b32 s{S_RB}, s{S_T0}, 15")
    partA(e)
    outgemm(e)
    e("L_work_fail:")
    e(f"v_mov_b32 v20, {DBG_ERR + 4}")
    e(f"v_mov_b32 v21, s{S_H}")
    e(f"v_add_u32 v21, 0x200, v21")
    e(f"buffer_store_dword v21, v20, {sr(SRD_DBG,4)}, 0 offen sc1")
    e("s_waitcnt vmcnt(0)")
    e("s_endpgm")
```

```python
import sys
from common import *
from team import *
from worker import *
NAME = "concat_heads__linear_attn_block__memory_aug_recurrent_mem_tr__prompt_kernel"
HEAD = open("concat_heads__linear_attn_block__memory_aug_recurrent_mem_tr__prompt.s.ref").read().split("; Override launch")[0]

def build(opt=None, prof=False, fake_xcc=None):
    opt = dict(opt or {})
    e = Asm()
    e.L.append(HEAD.rstrip("\n"))
    e.L.append("; @launch grid=(256,1,1) block=(256,1,1) lds=163840")
    e.L.append('.amdgcn_target "amdgcn-amd-amdhsa--gfx950"\n.text\n.globl %s\n.p2align 8\n.type %s,@function\n%s:' % (NAME, NAME, NAME))
    DBG = sr(SRD_DBG, 4)
    e("s_cmp_ge_u32 s2, 256")
    e("s_cbranch_scc0 L_go")
    e("L_team_done:")
    e("s_endpgm")
    e("L_go:")
    if opt.get("light"): e(f"s_memrealtime {sr(S_TS+18,2)}")
    e("s_load_dwordx16 s[40:55], s[0:1], 0")
    e("s_load_dwordx8 s[56:63], s[0:1], 64")
    e("s_load_dwordx2 s[64:65], s[0:1], 96")
    if fake_xcc is None:
        e(f"s_getreg_b32 s{S_T3}, hwreg(HW_REG_XCC_ID, 0, 3)")
    else:
        e(fake_xcc)
    e(f"v_lshrrev_b32 v1, 6, v0")
    e(f"s_lshl_b32 s{S_T1}, s{S_T3}, 2")
    e(f"v_readfirstlane_b32 s{S_WAVE}, v1")
    e(f"s_add_u32 s{S_T1}, s{S_T1}, {DBG_TICK}")
    e(f"s_cmp_eq_u32 s{S_T3}, 0")
    e(f"s_cselect_b32 s{S_T1}, {DBG_TICK0}, s{S_T1}")
    e(f"s_mov_b32 s{S_ANN}, 1")
    e(f"s_mov_b32 s{S_TOT}, 0")
    e(f"s_mov_b32 s{S_H}, 0")
    e("s_waitcnt lgkmcnt(0)")
    mk_srd(e, SRD_DBG, P_DBG, 256)
    mk_srd(e, SRD_WS, P_WS, WS_SIZE)
    def ticket(soff):
        e(f"v_mov_b32 v1, {OOB:#x}")
        e(f"v_cmp_eq_u32 vcc, 0, v0")
        e(f"v_mov_b32 v3, 1")
        e(f"v_mov_b32 v2, {ROLEL}")
        e(f"v_cndmask_b32 v1, v1, 0, vcc")
        e(f"buffer_atomic_add v3, v1, {DBG}, {soff} offen sc0")
        e("s_waitcnt vmcnt(0)")
        e("s_and_saveexec_b64 s[72:73], vcc")
        e("ds_write_b32 v2, v3")
        e("s_mov_b64 exec, s[72:73]")
        e("s_waitcnt lgkmcnt(0)")
        e("s_barrier")
        e("ds_read_b32 v3, v2")
        e("s_waitcnt lgkmcnt(0)")
        e(f"v_readfirstlane_b32 s{S_T0}, v3")
        e("s_barrier")
    ticket(f"s{S_T1}")
    e(f"s_lshl_b32 s{S_T2}, s{S_T3}, 5")
    e(f"s_add_u32 s{S_T2}, s{S_T2}, s{S_T0}")
    e(f"s_cmp_lt_u32 s{S_T0}, 32")
    e(f"s_cbranch_scc1 L_have_slot")
    e(f"v_and_b32 v4, 63, v0")
    e(f"v_lshlrev_b32 v4, 2, v4")
    e("L_ovf_wait:")
    spin_guard(e, 2)
    e(f"buffer_load_dword v5, v4, {DBG}, 0 offen sc1")
    e("s_waitcnt vmcnt(0)")
    e(f"v_readlane_b32 s24, v5, {DBG_TICK0//4}")
    for x in range(1, 8): e(f"v_readlane_b32 s{24+x}, v5, {DBG_TICK//4 + x}")
    e("s_nop 1")
    e(f"s_mov_b32 s{S_T0}, s24")
    for x in range(1, 8): e(f"s_add_u32 s{S_T0}, s{S_T0}, s{24+x}")
    e(f"s_cmp_lt_u32 s{S_T0}, 256")
    e(f"s_cbranch_scc1 L_ovf_wait")
    e(f"s_mov_b32 s{S_T1}, {DBG_OVF}")
    ticket(f"s{S_T1}")
    for x in range(8):
        e(f"s_min_u32 s{24+x}, s{24+x}, 32")
        e(f"s_add_u32 s{S_T2}, s{24+x}, s{S_T0}")
        e(f"s_cmp_lt_u32 s{S_T2}, 32")
        e(f"s_cbranch_scc1 L_ovf_{x}")
        e(f"s_sub_u32 s{S_T0}, s{S_T2}, 32")
    e("s_branch L_work_fail")
    for x in range(7, -1, -1):
        e(f"L_ovf_{x}:")
        if x: e(f"s_add_u32 s{S_T2}, s{S_T2}, 32")
    e(f"s_mov_b32 s{S_ANN}, 0x10001")
    e("L_have_slot:")
    e(f"s_cmp_ge_u32 s{S_T2}, 32")
    e(f"s_cbranch_scc1 L_worker")
    e(f"s_mov_b32 s{S_H}, s{S_T2}")
    if fake_xcc is not None: e(f"s_mov_b32 s{S_ANN}, 0x10001")
    team_code(e, prof, opt)
    e("L_worker:")
    e(f"s_sub_u32 s{S_T2}, s{S_T2}, 32")
    worker_code(e)
    e.L.append(f""".section .rodata,"a"
.p2align 6
.amdhsa_kernel {NAME}
  .amdhsa_next_free_vgpr 512
  .amdhsa_next_free_sgpr 102
  .amdhsa_accum_offset 256
  .amdhsa_group_segment_fixed_size 0
  .amdhsa_kernarg_size 104
  .amdhsa_user_sgpr_count 2
  .amdhsa_user_sgpr_kernarg_segment_ptr 1
  .amdhsa_system_sgpr_workgroup_id_x 1
.end_amdhsa_kernel""")
    return e.text()
if __name__ == "__main__":
    open("concat_heads__linear_attn_block__memory_aug_recurrent_mem_tr__prompt.s", "w").write(build())
```
